```python
import torch

def _softmax(x, axis=-1):
    return torch.softmax(x, dim=axis)
def _gelu(x):
    return torch.nn.functional.gelu(x, approximate="tanh")
def _silu(x):
    return torch.nn.functional.silu(x)
def _sigmoid(x):
    return torch.sigmoid(x)
def _layernorm(x, axis=-1, eps=1e-5):
    m = x.mean(dim=axis, keepdim=True)
    v = x.var(dim=axis, keepdim=True, unbiased=False)
    return (x - m) / torch.sqrt(v + eps)
def _scatter_add(tgt, idx, src, axis=0):
    return tgt.clone().index_add_(axis, idx, src)
def _segment_sum(src, seg, n):
    out = torch.zeros((n,) + src.shape[1:], dtype=src.dtype)
    return out.index_add_(0, seg, src)
def _pad(x, pw):
    flat = tuple(v for pair in reversed(pw) for v in pair)
    return torch.nn.functional.pad(x, flat)

kernel_name = 'parallel_sum__mha_block_cached__dense_activation_squared_relu__decode'

def setup_inputs():

    _w = (lambda a: (lambda t: t.to(torch.bfloat16) if t.is_floating_point() else t)(torch.as_tensor(a)))
    def _A_setup():
        B, Sq, D = 1, 1, 512
        H, Sk, Dh = 32, 65536, 128
        return {
            "x": _w((lambda *s: torch.randn(*s, dtype=torch.bfloat16) * 0.05)(B, Sq, D)),
            "k_cache": _w((lambda *s: torch.randn(*s, dtype=torch.bfloat16) * 3.2)(B, H, Sk, Dh)),
            "v_cache": _w((lambda *s: torch.randn(*s, dtype=torch.bfloat16) * 1.6)(B, H, Sk, Dh)),
            "wq": _w((lambda *s: torch.randn(*s, dtype=torch.bfloat16) * 3.2)(D, H * Dh) * (D ** -0.5)),
            "wo": _w((lambda *s: torch.randn(*s, dtype=torch.bfloat16) * 1.6)(H * Dh, D) * ((H * Dh) ** -0.5)),
        }
    _A_in = _A_setup()

    def _B_setup():
        B, S, D, F = 1, 1, 512, 1792
        return {
            "x": _w((lambda *s: torch.randn(*s, dtype=torch.bfloat16) * 0.05)(B, S, D)),
            "w1": _w((lambda *s: torch.randn(*s, dtype=torch.bfloat16) * 0.05)(D, F)),
            "b1": _w((lambda *s: torch.randn(*s, dtype=torch.bfloat16) * 0.05)(F)),
            "w2": _w((lambda *s: torch.randn(*s, dtype=torch.bfloat16) * 0.05)(F, D)),
            "b2": _w((lambda *s: torch.randn(*s, dtype=torch.bfloat16) * 0.05)(D)),
        }
    _B_in = _B_setup()

    return {
        "A_x": _A_in["x"],
        "A_k_cache": _A_in["k_cache"],
        "A_v_cache": _A_in["v_cache"],
        "A_wq": _A_in["wq"],
        "A_wo": _A_in["wo"],
        "B_x": _B_in["x"],
        "B_w1": _B_in["w1"],
        "B_b1": _B_in["b1"],
        "B_w2": _B_in["w2"],
        "B_b2": _B_in["b2"],
    }

def reference(A_x, A_k_cache, A_v_cache, A_wq, A_wo, B_x, B_w1, B_b1, B_w2, B_b2):
    def _A_ref(x, k_cache, v_cache, wq, wo):
        B, Sq, D = x.shape
        H, Dh = 32, 128
        q = (lambda x, *d: x.permute(*d))((x @ wq).reshape(B, Sq, H, Dh), 0, 2, 1, 3)
        scores = torch.einsum("bhqd,bhkd->bhqk", q, k_cache) * (Dh ** -0.5)
        p = _softmax(scores, axis=-1)
        o = torch.einsum("bhqk,bhkd->bhqd", p, v_cache)
        return (lambda x, *d: x.permute(*d))(o, 0, 2, 1, 3).reshape(B, Sq, H * Dh) @ wo

    def _B_ref(x, w1, b1, w2, b2):
        h = torch.einsum("bsd,df->bsf", x, w1) + b1
        zero = torch.zeros_like(h)
        r = torch.where(h > zero, h, zero)
        h = r * r
        out = torch.einsum("bsf,fd->bsd", h, w2) + b2
        return out

    x = A_x
    xn = _layernorm(x, axis=-1)
    return x + _A_ref(xn, A_k_cache, A_v_cache, A_wq, A_wo) + _B_ref(xn, B_w1, B_b1, B_w2, B_b2)
```

```python
import sys

NAME = "parallel_sum__mha_block_cached__dense_activation_squared_relu__decode"

HEADER = open("cdna_kernels/" + NAME + ".s.ref").read().split("; Override launch geometry")[0]

RING = 0
NSLOT = 8
CTRL = 131072
LANDED = CTRL + 0
QCNT = CTRL + 4
GEN = CTRL + 32
FIN = CTRL + 64
MPART = CTRL + 128
LPART = CTRL + 192
XN = CTRL + 512
PART = XN + 5 * 2048
QBUF = PART + 8192
OBUF = QBUF + 1024
HPART = OBUF + 256
HID = HPART + 2048
LDS_TOTAL = HID + 256

WS_PO = 0x0
WS_ML = 0x20000
WS_Y = 0x30000
WS_Z = 0x40000
WS_SIZE = 0x50000
WS_DBG = 0x8000000

LOG2E = 0x3FB8AA3B
SCALE = 0x3DB504F3
EPS = 0x3727C5AC
SENT = -1


def gen(W=20, W2=40, nboost=12, stamps=False, sleep_c=2, hmap="local", dbg=False):
    L = []
    A = L.append

    A(HEADER.rstrip("\n"))
    A(f"; @launch grid=(256,1,1) block=(384,1,1) lds={LDS_TOTAL}")
    A('.amdgcn_target "amdgcn-amd-amdhsa--gfx950"')
    A(".text")
    A(f".globl {NAME}_kernel")
    A(".p2align 8")
    A(f".type {NAME}_kernel,@function")
    A(f"{NAME}_kernel:")
    A("  s_cmp_ge_u32 s2, 256")
    A("  s_cbranch_scc1 L_end")
    if stamps:
        A("  s_memrealtime s[90:91]")
    A("  s_load_dwordx16 s[16:31], s[0:1], 0")
    A("  s_load_dwordx8 s[32:39], s[0:1], 64")
    A("  s_load_dwordx2 s[40:41], s[0:1], 96")
    A("  v_lshrrev_b32 v1, 6, v0")
    A("  v_and_b32 v0, 63, v0")
    A("  v_lshlrev_b32 v2, 4, v0")
    A("  v_readfirstlane_b32 s3, v1")
    if hmap == "local":
        A("  s_and_b32 s4, s2, 7")
        A("  s_lshl_b32 s4, s4, 2")
        A("  s_lshr_b32 s5, s2, 3")
        A("  s_and_b32 s5, s5, 3")
        A("  s_add_u32 s4, s4, s5")
        A("  s_lshr_b32 s5, s2, 5")
    else:
        A("  s_lshr_b32 s4, s2, 3")
        A("  s_and_b32 s5, s2, 7")
    A("  s_mov_b32 s98, 0x200000")
    A("  s_waitcnt lgkmcnt(0)")
    A("  s_mov_b32 s44, s40")
    A("  s_mov_b32 s45, s41")
    A(f"  s_mov_b32 s46, {0x10000000 if (stamps or dbg) else WS_SIZE}")
    A("  s_mov_b32 s47, 0x20000")
    A("  s_cmp_eq_u32 s3, 0")
    A("  s_cbranch_scc1 L_loader")
    A("  s_cmp_eq_u32 s3, 5")
    A("  s_cbranch_scc1 L_helper")
    A("  s_branch L_consumer")

    def budget():
        A("  s_sub_u32 s98, s98, 1")
        A("  s_cbranch_scc1 L_end")

    def srd(d, ptr, nbytes):
        A(f"  s_mov_b32 s{d}, s{ptr}")
        A(f"  s_mov_b32 s{d+1}, s{ptr+1}")
        A(f"  s_mov_b32 s{d+2}, {nbytes}")
        A(f"  s_mov_b32 s{d+3}, 0x20000")

    def stamp(slot):
        if not stamps:
            return
        A("  s_memrealtime s[92:93]")
        A("  s_getreg_b32 s94, hwreg(HW_REG_XCC_ID)")
        A("  s_waitcnt lgkmcnt(0)")
        A("  v_mov_b32 v240, s90")
        A("  v_mov_b32 v241, s91")
        A("  v_mov_b32 v242, s92")
        A("  v_mov_b32 v243, s94")
        A("  s_mul_i32 s95, s2, 6")
        A("  s_add_u32 s95, s95, s3")
        A("  s_lshl_b32 s95, s95, 4")
        A(f"  s_add_u32 s95, s95, {WS_DBG + slot * 0x100000}")
        A("  v_mov_b32 v244, 0")
        A("  s_mov_b64 s[96:97], exec")
        A("  s_mov_b64 exec, 1")
        A("  buffer_store_dwordx4 v[240:243], v244, s[44:47], s95 offen")
        A("  s_mov_b64 exec, s[96:97]")

    A("L_loader:")
    A("  s_setprio 3")
    A("  s_lshl_b32 s6, s4, 3")
    A("  s_add_u32 s6, s6, s5")
    A("  s_lshl_b32 s42, s6, 21")
    A("  s_lshr_b32 s43, s6, 11")
    A("  s_add_u32 s8, s18, s42")
    A("  s_addc_u32 s9, s19, s43")
    A("  s_mov_b32 s10, 0x200000")
    A("  s_mov_b32 s11, 0x20000")
    A("  s_add_u32 s12, s20, s42")
    A("  s_addc_u32 s13, s21, s43")
    A("  s_mov_b32 s14, 0x200000")
    A("  s_mov_b32 s15, 0x20000")
    SJ, SSLOT, SMO, SMO2, SPUB, ST, SG = 50, 51, 52, 53, 54, 55, 56
    A(f"  s_mov_b32 s{SJ}, 0")
    A(f"  s_mov_b32 s{SSLOT}, {RING}")
    A(f"  s_mov_b32 s{SMO}, 0")
    A(f"  s_mov_b32 s{SMO2}, 4096")
    A(f"  s_mov_b32 s{SPUB}, 0")
    A(f"  v_mov_b32 v4, {LANDED}")

    def ld_piece(i, w):
        p, t = i // 2, i % 2
        A(f"  s_add_u32 m0, s{SSLOT}, {t * 8192 + (p // 4) * 4096}")
        if w is None:
            A("  s_nop 0")
        else:
            A(f"  s_waitcnt vmcnt({w - 1})")

    def ld_issue(i):
        p, t = i // 2, i % 2
        srdn = "s[8:11]" if t == 0 else "s[12:15]"
        so = SMO if p < 4 else SMO2
        A(f"  buffer_load_dwordx4 v2, {srdn}, s{so} offen offset:{(p % 4) * 1024} nt lds")

    def ld_advance():
        A(f"  s_add_u32 s{SJ}, s{SJ}, 1")
        A(f"  s_add_u32 s{SSLOT}, s{SSLOT}, 16384")
        A(f"  s_and_b32 s{SSLOT}, s{SSLOT}, {NSLOT * 16384 - 1}")
        A(f"  s_add_u32 s{SMO}, s{SMO}, 8192")
        A(f"  s_add_u32 s{SMO2}, s{SMO2}, 8192")

    def ld_gen_read(nxt):
        A(f"  s_add_u32 s{ST}, s{SJ}, {nxt}")
        A(f"  s_and_b32 s{ST}, s{ST}, {NSLOT - 1}")
        A(f"  s_lshl_b32 s{ST}, s{ST}, 2")
        A(f"  s_add_u32 s{ST}, s{ST}, {GEN}")
        A(f"  v_mov_b32 v5, s{ST}")
        A("  ds_read_b32 v6, v5")

    def publish():
        A(f"  v_mov_b32 v3, s{SPUB}")
        A("  ds_write_b32 v4, v3")

    for i in range(16):
        ld_piece(i, None)
        ld_issue(i)
    ld_advance()
    A("  s_barrier")
    ld_gen_read(0)

    def ld_loop(tag, w, jend):
        ipub = (15 + w) % 16
        lag = (15 + w) // 16 - 1
        A(f"L_ld_loop{tag}:")
        A("  s_waitcnt lgkmcnt(0)")
        A(f"  v_readfirstlane_b32 s{SG}, v6")
        A(f"  s_lshr_b32 s{ST}, s{SJ}, 3")
        A(f"  s_cmp_ge_u32 s{SG}, s{ST}")
        A(f"  s_cbranch_scc0 L_ld_slow{tag}")
        A(f"L_ld_go{tag}:")
        for i in range(16):
            ld_piece(i, w)
            ld_issue(i)
            if i == ipub:
                A(f"  s_sub_u32 s{ST}, s{SJ}, {lag}")
                A(f"  s_max_u32 s{SPUB}, s{SPUB}, s{ST}")
                publish()
            if i == 10:
                ld_gen_read(1)
        ld_advance()
        A(f"  s_cmp_lt_u32 s{SJ}, {jend}")
        A(f"  s_cbranch_scc1 L_ld_loop{tag}")
        A(f"  s_branch L_ld_next{tag}")
        A(f"L_ld_slow{tag}:")
        A("  s_waitcnt vmcnt(0)")
        A(f"  s_max_u32 s{SPUB}, s{SPUB}, s{SJ}")
        publish()
        A(f"L_ld_slow2{tag}:")
        budget()
        A("  s_sleep 1")
        A("  ds_read_b32 v6, v5")
        A("  s_waitcnt lgkmcnt(0)")
        A(f"  v_readfirstlane_b32 s{SG}, v6")
        A(f"  s_lshr_b32 s{ST}, s{SJ}, 3")
        A(f"  s_cmp_ge_u32 s{SG}, s{ST}")
        A(f"  s_cbranch_scc0 L_ld_slow2{tag}")
        A(f"  s_branch L_ld_go{tag}")
        A(f"L_ld_next{tag}:")

    NT = 256
    ld_loop("A", W, NT - nboost)
    wl = W
    if nboost:
        ld_loop("B", W2, NT)
        wl = W2
    nrem = (wl + 15) // 16 + 1
    for k in range(nrem - 1, -1, -1):
        A(f"  s_waitcnt vmcnt({min(63, 16 * k)})")
        A(f"  s_max_u32 s{SPUB}, s{SPUB}, {NT - k}")
        publish()
    A("  s_waitcnt lgkmcnt(0)")
    stamp(0)
    A("  s_endpgm")

    def wave_allsum(v, t, s0):
        for r in (1, 2, 4, 8):
            A("  s_nop 1")
            A(f"  v_add_f32_dpp v{v}, v{v}, v{v} row_ror:{r} row_mask:0xf bank_mask:0xf")
        A("  s_nop 0")
        for k in range(4):
            A(f"  v_readlane_b32 s{s0 + k}, v{v}, {16 * k}")
        A("  s_nop 1")
        A(f"  v_mov_b32 v{v}, s{s0}")
        A(f"  v_mov_b32 v{t}, s{s0 + 2}")
        A(f"  v_add_f32 v{v}, s{s0 + 1}, v{v}")
        A(f"  v_add_f32 v{t}, s{s0 + 3}, v{t}")
        A(f"  v_add_f32 v{v}, v{v}, v{t}")

    def rnd1(v):
        A(f"  v_cvt_pk_bf16_f32 v{v}, 0, v{v}")

    def layernorm(xr, xnbase_sgpr):
        X = 8
        for k in range(4):
            A(f"  v_lshlrev_b32 v{X + 2 * k}, 16, v{xr + k}")
            A(f"  v_and_b32 v{X + 2 * k + 1}, 0xffff0000, v{xr + k}")
        A(f"  v_add_f32 v16, v{X}, v{X+1}")
        A(f"  v_add_f32 v17, v{X+2}, v{X+3}")
        A(f"  v_add_f32 v18, v{X+4}, v{X+5}")
        A(f"  v_add_f32 v19, v{X+6}, v{X+7}")
        A("  v_add_f32 v16, v16, v17")
        A("  v_add_f32 v18, v18, v19")
        A("  v_add_f32 v16, v16, v18")
        wave_allsum(16, 17, 60)
        A("  v_mul_f32 v16, 0x3b000000, v16")
        A("  v_mov_b32 v18, 0")
        for k in range(8):
            A(f"  v_sub_f32 v19, v{X + k}, v16")
            A("  v_fmac_f32 v18, v19, v19")
        wave_allsum(18, 17, 60)
        A("  v_mul_f32 v18, 0x3b000000, v18")
        rnd1(16)
        rnd1(18)
        A(f"  v_add_f32 v18, {hex(EPS)}, v18")
        rnd1(18)
        A("  v_sqrt_f32 v18, v18")
        A("  s_nop 0")
        rnd1(18)
        A("  v_rcp_f32 v19, v18")
        for k in range(8):
            A(f"  v_sub_f32 v{X + k}, v{X + k}, v16")
        for k in range(8):
            rnd1(X + k)
        for k in range(8):
            A(f"  v_mul_f32 v{20 + k}, v{X + k}, v19")
        for k in range(8):
            A(f"  v_fma_f32 v{X + k}, -v{20 + k}, v18, v{X + k}")
        for k in range(8):
            A(f"  v_fma_f32 v{20 + k}, v{X + k}, v19, v{20 + k}")
        for k in range(8):
            rnd1(20 + k)
        A("  v_lshlrev_b32 v16, 5, v0")
        A(f"  v_add_u32 v16, s{xnbase_sgpr}, v16")
        A("  ds_write_b128 v16, v[20:23]")
        A("  ds_write_b128 v16, v[24:27] offset:16")

    def gemv_acc(acc, wreg, lo, hi, first=False):
        for k in range(4):
            A(f"  v_dot2c_f32_bf16 v{acc + 2 * k}, v{lo}, v{wreg + k}")
            A(f"  v_dot2c_f32_bf16 v{acc + 2 * k + 1}, v{hi}, v{wreg + k}")

    A("L_helper:")
    srd(8, 16, 1024)
    srd(12, 28, 512 * 1792 * 2)
    srd(48, 32, 1792 * 512 * 2)
    srd(52, 30, 1792 * 2)
    srd(64, 34, 1024)
    srd(68, 38, 256)
    A("  v_lshlrev_b32 v3, 2, v0")
    A(f"  v_add_u32 v4, {CTRL}, v3")
    A("  v_mov_b32 v5, 0")
    A("  ds_write_b32 v4, v5")
    A("  buffer_load_dwordx4 v[28:31], v2, s[8:11], 0 offen")
    A("  s_lshl_b32 s6, s4, 3")
    A("  s_add_u32 s6, s6, s5")
    A(f"  v_mov_b32 v6, {SENT}")
    A(f"  v_mov_b32 v7, {SENT}")
    A("  v_lshlrev_b32 v4, 3, v0")
    A("  s_lshl_b32 s7, s6, 9")
    A("  buffer_store_dwordx2 v[6:7], v4, s[44:47], s7 offen sc0 sc1")
    A("  s_lshl_b32 s7, s6, 8")
    A(f"  s_add_u32 s57, s7, {WS_Y}")
    A("  buffer_store_dword v6, v3, s[44:47], s57 offen sc0 sc1")
    A("  s_lshl_b32 s58, s6, 3")
    A(f"  s_add_u32 s58, s58, {WS_ML}")
    A("  v_mov_b32 v5, 0")
    A("  s_mov_b64 exec, 1")
    A("  buffer_store_dwordx2 v[6:7], v5, s[44:47], s58 offen sc0 sc1")
    A("  s_mov_b64 exec, -1")
    A("  v_lshrrev_b32 v4, 3, v0")
    A("  v_and_b32 v5, 7, v0")
    A("  v_mul_u32_u24 v6, 3584, v4")
    A("  v_lshlrev_b32 v7, 4, v5")
    A("  v_add_u32 v6, v6, v7")
    A("  s_mul_i32 s59, s4, 112")
    for i in range(32):
        A(f"  buffer_load_dwordx4 v[{32 + 4 * i}:{35 + 4 * i}], v6, s[12:15], s59 offen")
        A(f"  s_add_u32 s59, s59, {8 * 3584}")
    A("  v_lshlrev_b32 v7, 10, v4")
    A("  v_lshl_add_u32 v7, v5, 4, v7")
    A("  s_mul_i32 s72, s4, 57344")
    A("  s_lshl_b32 s73, s5, 7")
    A("  s_add_u32 s72, s72, s73")
    for i in range(7):
        A(f"  buffer_load_dwordx4 v[{160 + 4 * i}:{163 + 4 * i}], v7, s[48:51], s72 offen")
        A("  s_add_u32 s72, s72, 8192")
    A("  v_lshlrev_b32 v7, 1, v0")
    A("  s_mul_i32 s72, s4, 112")
    A("  buffer_load_ushort v188, v7, s[52:55], s72 offen")
    A("  s_lshl_b32 s72, s5, 7")
    A("  s_lshl_b32 s73, s4, 2")
    A("  s_add_u32 s72, s72, s73")
    A("  v_mov_b32 v7, 0")
    A("  buffer_load_dword v189, v7, s[8:11], s72 offen")
    A("  buffer_load_dword v190, v7, s[64:67], s72 offen")
    A("  s_waitcnt lgkmcnt(0)")
    A("  s_barrier")
    A(f"  s_mov_b32 s74, {XN + 4 * 2048}")
    A(f"  s_waitcnt vmcnt({3 + 32 + 7 + 3})")
    layernorm(28, 74)
    A("  v_lshlrev_b32 v5, 2, v4")
    A("  v_add_u32 v5, s74, v5")
    for k in range(8):
        A(f"  v_mov_b32 v{8 + k}, 0")
    A("  s_waitcnt lgkmcnt(0)")
    for half in range(2):
        for blk in range(4):
            for i in range(8):
                A(f"  ds_read_b32 v{16 + i}, v5 offset:{(half * 32 + blk * 8 + i) * 32}")
            for i in range(8):
                ii = blk * 8 + i
                if half == 0:
                    A(f"  s_waitcnt vmcnt({31 + 10}) lgkmcnt({7 - i})")
                else:
                    A(f"  s_waitcnt vmcnt({31 - ii}) lgkmcnt({7 - i})")
                A(f"  v_lshrrev_b32 v24, 16, v{16 + i}")
                gemv_acc(8, 32 + 4 * ii, 24, 16 + i)
                if half == 0:
                    A(f"  buffer_load_dwordx4 v[{32 + 4 * ii}:{35 + 4 * ii}], v6, s[12:15], s59 offen")
                    A(f"  s_add_u32 s59, s59, {8 * 3584}")
    A(f"  v_lshlrev_b32 v5, 5, v0")
    A(f"  v_add_u32 v5, {HPART}, v5")
    A("  s_nop 1")
    A("  ds_write_b128 v5, v[8:11]")
    A("  ds_write_b128 v5, v[12:15] offset:16")
    A(f"  v_add_u32 v7, {HPART}, v3")
    A("  s_waitcnt lgkmcnt(0)")
    for g in range(8):
        A(f"  ds_read_b32 v{16 + g}, v7 offset:{g * 256}")
    A("  s_waitcnt lgkmcnt(0)")
    for a, b in ((16, 17), (18, 19), (20, 21), (22, 23), (16, 18), (20, 22), (16, 20)):
        A(f"  v_add_f32 v{a}, v{a}, v{b}")
    rnd1(16)
    A("  v_lshlrev_b32 v17, 16, v188")
    A("  v_add_f32 v16, v16, v17")
    rnd1(16)
    A("  v_cmp_lt_f32 vcc, 0, v16")
    A("  s_nop 1")
    A("  v_cndmask_b32 v16, 0, v16, vcc")
    A("  v_mul_f32 v16, v16, v16")
    rnd1(16)
    A(f"  v_add_u32 v17, {HID}, v3")
    A("  ds_write_b32 v17, v16")
    A("  v_lshlrev_b32 v17, 2, v4")
    A(f"  v_add_u32 v17, {HID}, v17")
    for k in range(8):
        A(f"  v_mov_b32 v{8 + k}, 0")
    A("  s_waitcnt lgkmcnt(0)")
    for i in range(7):
        A(f"  ds_read_b32 v{18 + i}, v17 offset:{i * 32}")
    A("  s_waitcnt lgkmcnt(0)")
    for i in range(7):
        A(f"  v_lshrrev_b32 v26, 16, v{18 + i}")
        gemv_acc(8, 160 + 4 * i, 26, 18 + i)
    A("  s_nop 2")
    A("  ds_write_b128 v5, v[8:11]")
    A("  ds_write_b128 v5, v[12:15] offset:16")
    A("  s_waitcnt lgkmcnt(0)")
    for g in range(8):
        A(f"  ds_read_b32 v{16 + g}, v7 offset:{g * 256}")
    A("  s_waitcnt lgkmcnt(0)")
    for a, b in ((16, 17), (18, 19), (20, 21), (22, 23), (16, 18), (20, 22), (16, 20)):
        A(f"  v_add_f32 v{a}, v{a}, v{b}")
    A(f"  s_add_u32 s57, s7, {WS_Z}")
    A("  buffer_store_dword v16, v3, s[44:47], s57 offen sc0 sc1")
    A("  s_waitcnt vmcnt(0)")
    A("  v_mov_b32 v5, 0")
    A("  v_mov_b32 v6, 1")
    A("  s_mov_b64 exec, 1")
    A("  buffer_atomic_add v6, v5, s[68:71], 0 offen sc1")
    A("  s_mov_b64 exec, -1")
    A("L_h_poll:")
    budget()
    A("  s_sleep 16")
    A("  buffer_load_dword v6, v5, s[68:71], 0 offen sc0 sc1")
    A("  s_waitcnt vmcnt(0)")
    A("  v_readfirstlane_b32 s75, v6")
    A("  s_cmp_ge_u32 s75, 256")
    A("  s_cbranch_scc0 L_h_poll")
    A("  v_and_b32 v5, 31, v0")
    A("  v_lshlrev_b32 v5, 11, v5")
    A("  s_lshl_b32 s73, s72, 1")
    A(f"  s_add_u32 s73, s73, {WS_Z}")
    A("  buffer_load_dwordx2 v[8:9], v5, s[44:47], s73 offen sc0 sc1")
    A("  s_waitcnt vmcnt(0)")
    for r in (1, 2, 4, 8):
        A("  s_nop 0")
        A(f"  v_add_f32_dpp v8, v8, v8 row_ror:{r} row_mask:0xf bank_mask:0xf")
        A(f"  v_add_f32_dpp v9, v9, v9 row_ror:{r} row_mask:0xf bank_mask:0xf")
    A("  s_nop 0")
    A("  v_readlane_b32 s60, v8, 16")
    A("  v_readlane_b32 s61, v9, 16")
    A("  s_nop 1")
    A("  v_add_f32 v8, s60, v8")
    A("  v_add_f32 v9, s61, v9")
    rnd1(8)
    rnd1(9)
    A("  v_lshlrev_b32 v10, 16, v190")
    A("  v_and_b32 v11, 0xffff0000, v190")
    A("  v_add_f32 v10, v8, v10")
    A("  v_add_f32 v11, v9, v11")
    rnd1(10)
    rnd1(11)
    A("  v_lshlrev_b32 v8, 16, v189")
    A("  v_and_b32 v9, 0xffff0000, v189")
    A(f"  v_mov_b32 v5, {FIN}")
    A("  s_mov_b64 exec, 1")
    A("  ds_write_b128 v5, v[8:11]")
    A("  s_waitcnt lgkmcnt(0)")
    A("  s_mov_b64 exec, -1")
    stamp(0)
    A("  s_endpgm")

    A("L_consumer:")
    A("  s_sub_u32 s6, s3, 1")
    srd(8, 16, 1024)
    srd(12, 22, 512 * 4096 * 2)
    srd(48, 24, 4096 * 512 * 2)
    srd(52, 36, 1024)
    A("  buffer_load_dwordx4 v[28:31], v2, s[8:11], 0 offen")
    A("  v_lshrrev_b32 v4, 4, v0")
    A("  v_and_b32 v5, 15, v0")
    A("  v_lshlrev_b32 v6, 13, v4")
    A("  v_lshl_add_u32 v6, v5, 4, v6")
    A("  s_lshl_b32 s56, s6, 20")
    A("  s_lshl_b32 s57, s4, 8")
    A("  s_add_u32 s56, s56, s57")
    for i in range(32):
        A(f"  buffer_load_dwordx4 v[{32 + 4 * i}:{35 + 4 * i}], v6, s[12:15], s56 offen")
        A("  s_add_u32 s56, s56, 32768")
    A("  v_lshrrev_b32 v7, 3, v0")
    A("  v_lshlrev_b32 v7, 10, v7")
    A("  v_and_b32 v3, 7, v0")
    A("  v_lshl_add_u32 v7, v3, 4, v7")
    A("  s_lshl_b32 s56, s4, 17")
    A("  s_lshl_b32 s57, s6, 15")
    A("  s_add_u32 s56, s56, s57")
    A("  s_lshl_b32 s57, s5, 7")
    A("  s_add_u32 s56, s56, s57")
    for i in range(4):
        A(f"  buffer_load_dwordx4 v[{160 + 4 * i}:{163 + 4 * i}], v7, s[48:51], s56 offen")
        A("  s_add_u32 s56, s56, 8192")
    A("  s_barrier")
    A("  s_lshl_b32 s74, s6, 11")
    A(f"  s_add_u32 s74, s74, {XN}")
    A("  s_waitcnt vmcnt(36)")
    layernorm(28, 74)
    A("  s_lshl_b32 s57, s6, 9")
    A("  s_add_u32 s57, s57, s74")
    A("  v_lshlrev_b32 v3, 2, v4")
    A("  v_add_u32 v3, s57, v3")
    for k in range(8):
        A(f"  v_mov_b32 v{8 + k}, 0")
    A("  s_waitcnt lgkmcnt(0)")
    for blk in range(4):
        for i in range(8):
            A(f"  ds_read_b32 v{16 + i}, v3 offset:{(blk * 8 + i) * 16}")
        for i in range(8):
            ii = blk * 8 + i
            A(f"  s_waitcnt vmcnt({31 - ii + 4}) lgkmcnt({7 - i})")
            A(f"  v_lshrrev_b32 v24, 16, v{16 + i}")
            gemv_acc(8, 32 + 4 * ii, 24, 16 + i)
    A("  s_lshl_b32 s57, s6, 11")
    A(f"  s_add_u32 s57, s57, {PART}")
    A("  v_lshlrev_b32 v176, 5, v0")
    A("  v_add_u32 v176, s57, v176")
    A("  s_nop 0")
    A("  ds_write_b128 v176, v[8:11]")
    A("  ds_write_b128 v176, v[12:15] offset:16")
    A(f"  v_mov_b32 v16, {QCNT}")
    A("  v_mov_b32 v17, 1")
    A("  s_waitcnt lgkmcnt(0)")
    A("  s_mov_b64 exec, 1")
    A("  ds_add_u32 v16, v17")
    A("  s_mov_b64 exec, -1")
    A("  v_lshlrev_b32 v177, 3, v0")
    A(f"  v_add_u32 v177, {PART}, v177")
    A("L_c_qwait:")
    budget()
    A("  ds_read_b32 v17, v16")
    A("  s_waitcnt lgkmcnt(0)")
    A("  v_readfirstlane_b32 s57, v17")
    A("  s_cmp_ge_u32 s57, 4")
    A("  s_cbranch_scc0 L_c_qwait")
    for half in range(2):
        for p in range(8):
            A(f"  ds_read_b64 v[{32 + 2 * p + 16 * half}:{33 + 2 * p + 16 * half}], v177 offset:{(half * 8 + p) * 512}")
    A("  s_waitcnt lgkmcnt(0)")
    for step in (8, 4, 2, 1):
        for p in range(step):
            A(f"  v_add_f32 v{32 + 2 * p}, v{32 + 2 * p}, v{32 + 2 * (p + step)}")
            A(f"  v_add_f32 v{33 + 2 * p}, v{33 + 2 * p}, v{33 + 2 * (p + step)}")
    A("  v_cvt_pk_bf16_f32 v32, v32, v33")
    A("  s_lshl_b32 s57, s6, 8")
    A(f"  s_add_u32 s57, s57, {QBUF}")
    A("  v_lshlrev_b32 v16, 2, v0")
    A("  v_add_u32 v16, s57, v16")
    A("  ds_write_b32 v16, v32")
    A("  v_lshlrev_b32 v16, 4, v5")
    A("  v_add_u32 v16, s57, v16")
    A("  s_waitcnt lgkmcnt(0)")
    A("  ds_read_b128 v[4:7], v16")
    if dbg:
        A("  s_lshl_b32 s57, s2, 2")
        A("  s_add_u32 s57, s57, s6")
        A("  s_lshl_b32 s57, s57, 8")
        A("  s_add_u32 s57, s57, 0x100000")
        A("  v_lshlrev_b32 v16, 2, v0")
        A("  buffer_store_dword v32, v16, s[44:47], s57 offen")
    ACC, VL, VM, VML = 8, 16, 17, 18
    S = 20
    KR, VR = 32, 64
    for k in range(8):
        A(f"  v_mov_b32 v{ACC + k}, 0")
    A(f"  v_mov_b32 v{VL}, 0")
    A(f"  v_mov_b32 v{VM}, 0xff800000")
    A(f"  v_mov_b32 v{VML}, 0xff800000")
    A(f"  v_mov_b32 v19, {LANDED}")
    A(f"  s_mov_b32 s60, {hex(LOG2E)}")
    A(f"  s_mov_b32 s61, {hex(SCALE)}")
    A("  s_mov_b32 s62, 0xffff0000")
    STI = 63
    A(f"  s_mov_b32 s{STI}, s6")
    A("  s_waitcnt lgkmcnt(0)")
    stamp(1)
    A("L_c_loop:")
    A("L_c_poll:")
    A("  ds_read_b32 v28, v19")
    A(f"  s_and_b32 s64, s{STI}, {NSLOT - 1}")
    A("  s_lshl_b32 s65, s64, 14")
    A("  v_add_u32 v29, s65, v2")
    A("  s_waitcnt lgkmcnt(0)")
    A("  v_readfirstlane_b32 s57, v28")
    A(f"  s_cmp_gt_u32 s57, s{STI}")
    A("  s_cbranch_scc1 L_c_go")
    budget()
    A(f"  s_sleep {sleep_c}")
    A("  s_branch L_c_poll")
    A("L_c_go:")
    for i in range(8):
        A(f"  ds_read_b128 v[{KR + 4 * i}:{KR + 4 * i + 3}], v29 offset:{i * 1024}")
    for i in range(7):
        A(f"  ds_read_b128 v[{VR + 4 * i}:{VR + 4 * i + 3}], v29 offset:{8192 + i * 1024}")
    A("  s_lshl_b32 s64, s64, 2")
    A(f"  s_add_u32 s64, s64, {GEN}")
    A(f"  s_lshr_b32 s65, s{STI}, 3")
    A("  s_add_u32 s65, s65, 1")
    A("  v_mov_b32 v30, s64")
    A("  v_mov_b32 v31, s65")
    A("  s_waitcnt lgkmcnt(7)")
    A(f"  ds_read_b128 v[{VR + 28}:{VR + 31}], v29 offset:{8192 + 7 * 1024}")
    for i in range(8):
        A(f"  v_dot2_f32_bf16 v{S + i}, v{KR + 4 * i}, v4, 0")
    for k in range(1, 4):
        for i in range(8):
            A(f"  v_dot2_f32_bf16 v{S + i}, v{KR + 4 * i + k}, v{4 + k}, v{S + i}")
    A("  s_waitcnt lgkmcnt(0)")
    A("  ds_write_b32 v30, v31")
    A("  s_nop 0")
    for j in range(4):
        A(f"  v_add_f32_dpp v{S + 2 * j}, v{S + 2 * j}, v{S + 2 * j} row_ror:8 row_mask:0xf bank_mask:0x3")
    for j in range(4):
        A(f"  v_add_f32_dpp v{S + 2 * j}, v{S + 2 * j + 1}, v{S + 2 * j + 1} row_ror:8 row_mask:0xf bank_mask:0xc")
    A(f"  v_add_f32_dpp v{S}, v{S}, v{S} row_half_mirror row_mask:0xf bank_mask:0x5")
    A(f"  v_add_f32_dpp v{S}, v{S + 2}, v{S + 2} row_half_mirror row_mask:0xf bank_mask:0xa")
    A(f"  v_add_f32_dpp v{S + 4}, v{S + 4}, v{S + 4} row_half_mirror row_mask:0xf bank_mask:0x5")
    A(f"  v_add_f32_dpp v{S + 4}, v{S + 6}, v{S + 6} row_half_mirror row_mask:0xf bank_mask:0xa")
    A("  s_nop 0")
    A(f"  v_add_f32_dpp v{S}, v{S}, v{S} quad_perm:[1,0,3,2] row_mask:0xf bank_mask:0xf")
    A(f"  v_add_f32_dpp v{S + 4}, v{S + 4}, v{S + 4} quad_perm:[1,0,3,2] row_mask:0xf bank_mask:0xf")
    A("  s_nop 0")
    A(f"  v_add_f32_dpp v{S}, v{S}, v{S} quad_perm:[2,3,0,1] row_mask:0xf bank_mask:0xf")
    A(f"  v_add_f32_dpp v{S + 4}, v{S + 4}, v{S + 4} quad_perm:[2,3,0,1] row_mask:0xf bank_mask:0xf")
    U0, U1 = S, S + 4
    A(f"  v_cvt_pk_bf16_f32 v{U0}, 0, v{U0}")
    A(f"  v_cvt_pk_bf16_f32 v{U1}, 0, v{U1}")
    A(f"  v_mul_f32 v{U0}, s61, v{U0}")
    A(f"  v_mul_f32 v{U1}, s61, v{U1}")
    A(f"  v_cvt_pk_bf16_f32 v{U0}, 0, v{U0}")
    A(f"  v_cvt_pk_bf16_f32 v{U1}, 0, v{U1}")
    A(f"  v_max_f32 v{S + 1}, v{U0}, v{U1}")
    A(f"  v_cmp_gt_f32 vcc, v{S + 1}, v{VM}")
    A("  s_cbranch_vccnz L_c_newmax")
    A("L_c_cont:")
    A(f"  v_fma_f32 v{U0}, v{U0}, s60, -v{VML}")
    A(f"  v_fma_f32 v{U1}, v{U1}, s60, -v{VML}")
    A(f"  v_exp_f32 v{U0}, v{U0}")
    A(f"  v_exp_f32 v{U1}, v{U1}")
    A("  s_nop 0")
    P0L, P0H, P1L, P1H = S + 1, S + 2, S + 5, S + 6
    A(f"  v_cvt_pk_bf16_f32 v{P0L}, v{U0}, 0")
    A(f"  v_cvt_pk_bf16_f32 v{P0H}, 0, v{U0}")
    A(f"  v_cvt_pk_bf16_f32 v{P1L}, v{U1}, 0")
    A(f"  v_cvt_pk_bf16_f32 v{P1H}, 0, v{U1}")
    A(f"  v_add_f32 v{VL}, v{VL}, v{U0}")
    A(f"  v_add_f32 v{VL}, v{VL}, v{U1}")
    bank_of = {0: 0, 2: 1, 1: 2, 3: 3}
    for i in range(8):
        pl, ph = (P0L, P0H) if i < 4 else (P1L, P1H)
        b = bank_of[i % 4]
        for k in range(4):
            A(f"  v_dot2c_f32_bf16_dpp v{ACC + 2 * k}, v{pl}, v{VR + 4 * i + k} row_newbcast:{4 * b} row_mask:0xf bank_mask:0xf")
            A(f"  v_dot2c_f32_bf16_dpp v{ACC + 2 * k + 1}, v{ph}, v{VR + 4 * i + k} row_newbcast:{4 * b} row_mask:0xf bank_mask:0xf")
    A(f"  s_add_u32 s{STI}, s{STI}, 4")
    A(f"  s_cmp_lt_u32 s{STI}, {NT}")
    A("  s_cbranch_scc1 L_c_loop")
    A("  s_branch L_c_end")
    A("L_c_newmax:")
    T = S + 1
    A("  s_nop 0")
    A(f"  v_max_f32_dpp v{T}, v{T}, v{T} row_ror:4 row_mask:0xf bank_mask:0xf")
    A("  s_nop 1")
    A(f"  v_max_f32_dpp v{T}, v{T}, v{T} row_ror:8 row_mask:0xf bank_mask:0xf")
    A("  s_nop 0")
    for k in range(4):
        A(f"  v_readlane_b32 s{64 + k}, v{T}, {16 * k}")
    A("  s_nop 1")
    A(f"  v_max_f32 v{VM}, s64, v{VM}")
    A(f"  v_max_f32 v{VM}, s65, v{VM}")
    A(f"  v_max_f32 v{VM}, s66, v{VM}")
    A(f"  v_max_f32 v{VM}, s67, v{VM}")
    A(f"  v_mul_f32 v{T}, s60, v{VM}")
    A(f"  v_sub_f32 v{S + 2}, v{VML}, v{T}")
    A(f"  v_exp_f32 v{S + 2}, v{S + 2}")
    A(f"  v_mov_b32 v{VML}, v{T}")
    for k in range(8):
        A(f"  v_mul_f32 v{ACC + k}, v{ACC + k}, v{S + 2}")
    A(f"  v_mul_f32 v{VL}, v{VL}, v{S + 2}")
    A("  s_branch L_c_cont")

    A("L_c_end:")
    stamp(2)
    A("  s_nop 1")
    A(f"  v_add_f32_dpp v{VL}, v{VL}, v{VL} row_ror:4 row_mask:0xf bank_mask:0xf")
    A("  s_nop 1")
    A(f"  v_add_f32_dpp v{VL}, v{VL}, v{VL} row_ror:8 row_mask:0xf bank_mask:0xf")
    A(f"  ds_write_b128 v176, v[{ACC}:{ACC + 3}]")
    A(f"  ds_write_b128 v176, v[{ACC + 4}:{ACC + 7}] offset:16")
    A("  v_lshrrev_b32 v20, 4, v0")
    A("  v_lshlrev_b32 v20, 2, v20")
    A("  s_lshl_b32 s57, s6, 4")
    A(f"  s_add_u32 s57, s57, {LPART}")
    A("  v_add_u32 v20, s57, v20")
    A(f"  ds_write_b32 v20, v{VL}")
    A("  s_lshl_b32 s57, s6, 2")
    A(f"  s_add_u32 s57, s57, {MPART}")
    A("  v_mov_b32 v20, s57")
    A(f"  ds_write_b32 v20, v{VML}")
    A("  s_waitcnt lgkmcnt(0)")
    A("  s_barrier")
    A("  s_lshl_b32 s7, s4, 3")
    A("  s_add_u32 s7, s7, s5")
    A("  s_cmp_lg_u32 s6, 0")
    A("  s_cbranch_scc1 L_e_gemv")
    A(f"  v_mov_b32 v20, {MPART}")
    A("  ds_read_b128 v[24:27], v20")
    for k in range(4):
        A(f"  ds_read_b128 v[{96 + 4 * k}:{99 + 4 * k}], v20 offset:{LPART - MPART + 16 * k}")
    for p in range(8):
        A(f"  ds_read_b64 v[{32 + 2 * p}:{33 + 2 * p}], v177 offset:{p * 512}")
    A("  s_waitcnt lgkmcnt(8)")
    for p in range(8, 16):
        A(f"  ds_read_b64 v[{32 + 2 * p}:{33 + 2 * p}], v177 offset:{p * 512}")
    A("  v_max_f32 v28, v24, v25")
    A("  v_max3_f32 v28, v26, v27, v28")
    for k in range(4):
        A(f"  v_sub_f32 v{24 + k}, v{24 + k}, v28")
    for k in range(4):
        A(f"  v_exp_f32 v{24 + k}, v{24 + k}")
    for k in range(4):
        b = 96 + 4 * k
        A(f"  v_add_f32 v{b}, v{b}, v{b + 1}")
        A(f"  v_add_f32 v{b + 2}, v{b + 2}, v{b + 3}")
        A(f"  v_add_f32 v{b}, v{b}, v{b + 2}")
    A("  v_mul_f32 v29, v24, v96")
    A("  v_fmac_f32 v29, v25, v100")
    A("  v_fmac_f32 v29, v26, v104")
    A("  v_fmac_f32 v29, v27, v108")
    A("  s_waitcnt lgkmcnt(0)")
    for k in range(4):
        b = 32 + 8 * k
        for e in range(2):
            A(f"  v_add_f32 v{b + e}, v{b + e}, v{b + 2 + e}")
            A(f"  v_add_f32 v{b + 4 + e}, v{b + 4 + e}, v{b + 6 + e}")
            A(f"  v_add_f32 v{b + e}, v{b + e}, v{b + 4 + e}")
    for e in range(2):
        A(f"  v_mul_f32 v{30 + e}, v24, v{32 + e}")
        A(f"  v_fmac_f32 v{30 + e}, v25, v{40 + e}")
        A(f"  v_fmac_f32 v{30 + e}, v26, v{48 + e}")
        A(f"  v_fmac_f32 v{30 + e}, v27, v{56 + e}")
    for r in (28, 29, 30, 31):
        A(f"  v_min_u32 v{r}, -2, v{r}")
    A("  v_lshlrev_b32 v20, 3, v0")
    A("  s_lshl_b32 s57, s7, 9")
    A("  buffer_store_dwordx2 v[30:31], v20, s[44:47], s57 offen sc0 sc1")
    A("  s_lshl_b32 s57, s7, 3")
    A(f"  s_add_u32 s57, s57, {WS_ML}")
    A("  v_mov_b32 v21, 0")
    A("  s_mov_b64 exec, 1")
    A("  buffer_store_dwordx2 v[28:29], v21, s[44:47], s57 offen sc0 sc1")
    A("  s_mov_b64 exec, -1")
    A("  s_lshl_b32 s56, s4, 12")
    A("  s_lshl_b32 s57, s4, 6")
    A(f"  s_add_u32 s57, s57, {WS_ML}")
    A("L_e_poll1:")
    for k in range(8):
        A(f"  buffer_load_dwordx2 v[{32 + 2 * k}:{33 + 2 * k}], v20, s[44:47], s56 offen offset:{k * 512} sc0 sc1")
    for k in range(4):
        A(f"  buffer_load_dwordx4 v[{48 + 4 * k}:{51 + 4 * k}], v21, s[44:47], s57 offen offset:{k * 16} sc0 sc1")
    A("  s_waitcnt vmcnt(0)")
    A("  v_max_u32 v22, v32, v33")
    for r in range(34, 64, 2):
        A(f"  v_max3_u32 v22, v{r}, v{r + 1}, v22")
    A("  v_cmp_eq_u32 vcc, -1, v22")
    A("  s_cbranch_vccz L_e_got1")
    budget()
    A("  s_sleep 2")
    A("  s_branch L_e_poll1")
    A("L_e_got1:")
    A("  v_max_f32 v22, v48, v50")
    A("  v_max3_f32 v22, v52, v54, v22")
    A("  v_max3_f32 v22, v56, v58, v22")
    A("  v_max3_f32 v22, v60, v62, v22")
    for k in range(8):
        A(f"  v_sub_f32 v{48 + 2 * k}, v{48 + 2 * k}, v22")
    for k in range(8):
        A(f"  v_exp_f32 v{48 + 2 * k}, v{48 + 2 * k}")
    A("  s_nop 0")
    A("  v_mul_f32 v23, v48, v49")
    A("  v_mul_f32 v24, v48, v32")
    A("  v_mul_f32 v25, v48, v33")
    for k in range(1, 8):
        A(f"  v_fmac_f32 v23, v{48 + 2 * k}, v{49 + 2 * k}")
        A(f"  v_fmac_f32 v24, v{48 + 2 * k}, v{32 + 2 * k}")
        A(f"  v_fmac_f32 v25, v{48 + 2 * k}, v{33 + 2 * k}")
    A("  v_rcp_f32 v23, v23")
    A("  s_nop 0")
    A("  v_mul_f32 v24, v24, v23")
    A("  v_mul_f32 v25, v25, v23")
    A("  v_cvt_pk_bf16_f32 v24, v24, v25")
    A("  v_lshlrev_b32 v22, 2, v0")
    A(f"  v_add_u32 v22, {OBUF}, v22")
    A("  ds_write_b32 v22, v24")
    A("  s_waitcnt lgkmcnt(0)")
    A("L_e_gemv:")
    A("  s_barrier")
    A("  v_lshrrev_b32 v20, 3, v0")
    A("  v_lshlrev_b32 v20, 1, v20")
    A("  s_lshl_b32 s57, s6, 6")
    A(f"  s_add_u32 s57, s57, {OBUF}")
    A("  v_add_u32 v20, s57, v20")
    for i in range(4):
        A(f"  ds_read_u16 v{24 + i}, v20 offset:{i * 16}")
    for k in range(8):
        A(f"  v_mov_b32 v{8 + k}, 0")
    A("  s_waitcnt vmcnt(0) lgkmcnt(0)")
    for i in range(4):
        A(f"  v_lshlrev_b32 v{28 + i}, 16, v{24 + i}")
    for i in range(4):
        gemv_acc(8, 160 + 4 * i, 24 + i, 28 + i)
    A("  s_nop 2")
    A("  ds_write_b128 v176, v[8:11]")
    A("  ds_write_b128 v176, v[12:15] offset:16")
    A("  s_waitcnt lgkmcnt(0)")
    A("  s_barrier")
    A("  s_cmp_lg_u32 s6, 0")
    A("  s_cbranch_scc1 L_end")
    A("  v_lshlrev_b32 v20, 2, v0")
    A(f"  v_add_u32 v21, {PART}, v20")
    for blk in range(4):
        for p in range(8):
            A(f"  ds_read_b32 v{32 + blk * 8 + p}, v21 offset:{(blk * 8 + p) * 256}")
        if blk in (1, 2):
            A("  s_waitcnt lgkmcnt(7)")
    A(f"  v_mov_b32 v22, {FIN}")
    A("  s_waitcnt lgkmcnt(0)")
    A("  ds_read_b128 v[24:27], v22")
    for step in (16, 8, 4, 2, 1):
        for p in range(step):
            A(f"  v_add_f32 v{32 + p}, v{32 + p}, v{32 + p + step}")
    A("  v_min_u32 v32, -2, v32")
    A("  s_lshl_b32 s57, s7, 8")
    A(f"  s_add_u32 s57, s57, {WS_Y}")
    A("  buffer_store_dword v32, v20, s[44:47], s57 offen sc0 sc1")
    A("  v_and_b32 v21, 31, v0")
    A("  v_lshlrev_b32 v21, 11, v21")
    A("  s_lshl_b32 s56, s5, 8")
    A("  s_lshl_b32 s57, s4, 3")
    A("  s_add_u32 s56, s56, s57")
    A(f"  s_add_u32 s57, s56, {WS_Y}")
    A("L_e_poll2:")
    A("  buffer_load_dwordx2 v[8:9], v21, s[44:47], s57 offen sc0 sc1")
    A("  s_waitcnt vmcnt(0)")
    A("  v_max_u32 v10, v8, v9")
    A("  v_cmp_eq_u32 vcc, -1, v10")
    A("  s_cbranch_vccz L_e_got2")
    budget()
    A("  s_sleep 2")
    A("  s_branch L_e_poll2")
    A("L_e_got2:")
    for r in (1, 2, 4, 8):
        A("  s_nop 0")
        A(f"  v_add_f32_dpp v8, v8, v8 row_ror:{r} row_mask:0xf bank_mask:0xf")
        A(f"  v_add_f32_dpp v9, v9, v9 row_ror:{r} row_mask:0xf bank_mask:0xf")
    A("  s_nop 0")
    A("  v_readlane_b32 s60, v8, 16")
    A("  v_readlane_b32 s61, v9, 16")
    A("  s_nop 1")
    A("  v_add_f32 v8, s60, v8")
    A("  v_add_f32 v9, s61, v9")
    rnd1(8)
    rnd1(9)
    A("  s_waitcnt lgkmcnt(0)")
    A("  v_add_f32 v8, v24, v8")
    A("  v_add_f32 v9, v25, v9")
    rnd1(8)
    rnd1(9)
    A("  v_add_f32 v8, v8, v26")
    A("  v_add_f32 v9, v9, v27")
    A("  v_cvt_pk_bf16_f32 v8, v8, v9")
    A("  s_lshr_b32 s56, s56, 1")
    A("  v_mov_b32 v9, 0")
    A("  s_mov_b64 exec, 1")
    A("  buffer_store_dword v8, v9, s[52:55], s56 offen")
    A("  s_mov_b64 exec, -1")
    stamp(0)
    A("L_end:")
    A("  s_endpgm")

    nv = 248 if stamps else 192
    A('.section .rodata,"a"')
    A(".p2align 6")
    A(f".amdhsa_kernel {NAME}_kernel")
    A(f"  .amdhsa_next_free_vgpr {nv}")
    A("  .amdhsa_next_free_sgpr 102")
    A(f"  .amdhsa_accum_offset {nv}")
    A("  .amdhsa_group_segment_fixed_size 0")
    A("  .amdhsa_kernarg_size 104")
    A("  .amdhsa_user_sgpr_count 2")
    A("  .amdhsa_user_sgpr_kernarg_segment_ptr 1")
    A("  .amdhsa_system_sgpr_workgroup_id_x 1")
    A("  .amdhsa_float_denorm_mode_32 3")
    A(".end_amdhsa_kernel")
    return "\n".join(L) + "\n"


if __name__ == "__main__":
    out = sys.argv[1] if len(sys.argv) > 1 else "cdna_kernels/" + NAME + ".s"
    kw = {}
    for a in sys.argv[2:]:
        k, v = a.split("=")
        kw[k] = v if k == "hmap" else int(v)
    open(out, "w").write(gen(**kw))
```

```python
import sys

NAME = "parallel_sum__mha_block_cached__dense_activation_squared_relu__decode"
HEADER = open("cdna_kernels/" + NAME + ".s.ref").read().split("; Override launch geometry")[0]

RING = 0
NSLOT = 8
CTRL = 131072
LANDED = CTRL + 0
QCNT = CTRL + 8
MCNT = CTRL + 12
GOK = CTRL + 16
GEN = CTRL + 32
FIN = CTRL + 64
WML = CTRL + 128
R1 = CTRL + 512
R2 = R1 + 8192
XN = R1
SC = R1
QPART = R2
PART = R1
HXN = R2 + 8192
QBUF = HXN + 2048
HPART = QBUF + 1024
HID = HPART + 2048
ZB = HID + 256
EL = ZB + 256
YP = EL + 256
LDS_TOTAL = YP + 1024

WS_E = 0x0
WS_RESET = 0x8000
WS_YZ = 0x10000
WS_PO = 0x50000
WS_SIZE = 0x90000
WS_DBG = 0x8000000

LOG2E = 0x3FB8AA3B
SCALE = 0x3DB504F3
EPS = 0x3727C5AC


def gen(W=20, stamps=0, sleep_c=2, hstart=12, sig0=48, qchk=88, hwin=4, psleep=1, fine=0, sched="12:40"):
    L = []
    A = L.append
    NT = 256

    A(HEADER.rstrip("\n"))
    A(f"; @launch grid=(256,1,1) block=(384,1,1) lds={LDS_TOTAL}")
    A('.amdgcn_target "amdgcn-amd-amdhsa--gfx950"')
    A(".text")
    A(f".globl {NAME}_kernel")
    A(".p2align 8")
    A(f".type {NAME}_kernel,@function")
    A(f"{NAME}_kernel:")
    A("  s_cmp_ge_u32 s2, 256")
    A("  s_cbranch_scc1 L_end")
    if stamps:
        A("  s_memrealtime s[90:91]")
    A("  s_load_dwordx16 s[16:31], s[0:1], 0")
    A("  s_load_dwordx8 s[32:39], s[0:1], 64")
    A("  s_load_dwordx2 s[40:41], s[0:1], 96")
    A("  v_lshrrev_b32 v1, 6, v0")
    A("  v_and_b32 v0, 63, v0")
    A("  v_lshlrev_b32 v2, 4, v0")
    A("  v_readfirstlane_b32 s3, v1")
    A("  s_and_b32 s4, s2, 7")
    A("  s_lshl_b32 s4, s4, 2")
    A("  s_lshr_b32 s5, s2, 3")
    A("  s_and_b32 s5, s5, 3")
    A("  s_add_u32 s4, s4, s5")
    A("  s_lshr_b32 s5, s2, 5")
    A("  s_lshl_b32 s7, s4, 3")
    A("  s_add_u32 s7, s7, s5")
    A("  s_mov_b32 s98, 0x200000")
    A("  s_cmp_lg_u32 s3, 0")
    A("  s_waitcnt lgkmcnt(0)")
    A("  s_cbranch_scc1 L_notloader")

    def budget():
        A("  s_sub_u32 s98, s98, 1")
        A("  s_cbranch_scc1 L_end")

    def srd(d, ptr, nbytes):
        A(f"  s_mov_b32 s{d}, s{ptr}")
        A(f"  s_mov_b32 s{d+1}, s{ptr+1}")
        A(f"  s_mov_b32 s{d+2}, {nbytes}")
        A(f"  s_mov_b32 s{d+3}, 0x20000")

    def ws_srd():
        srd(44, 40, 0x10000000 if stamps else WS_SIZE)

    def stamp(slot):
        if not stamps:
            return
        A("  s_memrealtime s[92:93]")
        A("  s_getreg_b32 s94, hwreg(HW_REG_XCC_ID)")
        A("  s_waitcnt lgkmcnt(0)")
        A("  v_mov_b32 v240, s90")
        A("  v_mov_b32 v241, s91")
        A("  v_mov_b32 v242, s92")
        A("  v_mov_b32 v243, s94")
        A("  s_mul_i32 s95, s2, 6")
        A("  s_add_u32 s95, s95, s3")
        A("  s_lshl_b32 s95, s95, 4")
        A(f"  s_add_u32 s95, s95, {WS_DBG + slot * 0x100000}")
        A("  v_mov_b32 v244, 0")
        A("  s_mov_b64 s[96:97], exec")
        A("  s_mov_b64 exec, 1")
        A("  buffer_store_dwordx4 v[240:243], v244, s[44:47], s95 offen")
        A("  s_mov_b64 exec, s[96:97]")

    def ts(k):
        if stamps:
            A(f"  s_memrealtime s[{20 + 2 * k}:{21 + 2 * k}]")

    A("  s_lshl_b32 s42, s7, 21")
    A("  s_lshr_b32 s43, s7, 11")
    A("  s_add_u32 s8, s18, s42")
    A("  s_addc_u32 s9, s19, s43")
    A("  s_mov_b32 s10, 0x200000")
    A("  s_mov_b32 s11, 0x20000")
    SJ, SSLOT, SMO, SPUB, ST, SG = 50, 51, 52, 54, 55, 56
    A(f"  s_mov_b32 s{SSLOT}, {RING}")
    A(f"  s_mov_b32 s{SMO}, 0")

    def ld_tile(w, srdn, hook=None):
        for i in range(16):
            if i % 4 == 0:
                A(f"  s_add_u32 m0, s{SSLOT}, {(i // 4) * 4096}")
                if w is None:
                    A("  s_nop 0")
            if w is not None:
                A(f"  s_waitcnt vmcnt({w - 1})")
            A(f"  buffer_load_dwordx4 v2, {srdn}, s{SMO} offen offset:{(i % 4) * 1024} nt lds")
            if i % 4 == 3:
                A(f"  s_add_u32 s{SMO}, s{SMO}, 4096")
            if hook:
                hook(i)

    def ld_advance():
        A(f"  s_add_u32 s{SJ}, s{SJ}, 1")
        A(f"  s_add_u32 s{SSLOT}, s{SSLOT}, 16384")
        A(f"  s_and_b32 s{SSLOT}, s{SSLOT}, {NSLOT * 16384 - 1}")

    def ld_gen_read(nxt):
        A(f"  s_add_u32 s{ST}, s{SJ}, {nxt}")
        A(f"  s_and_b32 s{ST}, s{ST}, {NSLOT - 1}")
        A(f"  s_lshl_b32 s{ST}, s{ST}, 2")
        A(f"  s_add_u32 s{ST}, s{ST}, {GEN}")
        A(f"  v_mov_b32 v5, s{ST}")
        A("  ds_read_b32 v6, v5")

    def publish():
        A(f"  v_mov_b32 v3, s{SPUB}")
        A("  ds_write_b32 v4, v3")

    ld_tile(None, "s[8:11]")
    A("  s_setprio 3")
    A("  s_add_u32 s12, s20, s42")
    A("  s_addc_u32 s13, s21, s43")
    A("  s_mov_b32 s14, 0x200000")
    A("  s_mov_b32 s15, 0x20000")
    A(f"  s_mov_b32 s{SJ}, 0")
    A(f"  s_mov_b32 s{SPUB}, 0")
    A(f"  v_mov_b32 v4, {LANDED}")
    ld_advance()
    if stamps:
        ws_srd()
    A("  s_barrier")
    if stamps:
        A("  v_mov_b32 v10, 0")
        A("  s_memrealtime s[92:93]")
    ld_gen_read(0)

    def prog_stamp():
        if stamps:
            if fine:
                A(f"  s_sub_u32 m0, s{SJ}, {fine}")
                A("  s_max_i32 m0, m0, 0")
            else:
                A(f"  s_lshr_b32 m0, s{SJ}, 2")
            A("  s_min_u32 m0, m0, 63")
            A("  s_nop 0")
            A("  v_writelane_b32 v10, s92, m0")

    def ld_loop(tag, w, jend, srdn):
        ipub = (15 + w) % 16
        lag = (15 + w) // 16 - 1

        def hook(i):
            if i == ipub:
                A(f"  s_sub_u32 s{ST}, s{SJ}, {lag}")
                A(f"  s_max_i32 s{SPUB}, s{SPUB}, s{ST}")
                publish()
            if i == 10:
                ld_gen_read(1)

        A(f"L_ld_loop{tag}:")
        A("  s_waitcnt lgkmcnt(0)")
        prog_stamp()
        A(f"  v_readfirstlane_b32 s{SG}, v6")
        A(f"  s_lshr_b32 s{ST}, s{SJ}, 3")
        A(f"  s_cmp_ge_u32 s{SG}, s{ST}")
        A(f"  s_cbranch_scc0 L_ld_slow{tag}")
        A(f"L_ld_go{tag}:")
        ld_tile(w, srdn, hook)
        ld_advance()
        if stamps:
            A("  s_memrealtime s[92:93]")
        A(f"  s_cmp_lt_u32 s{SJ}, {jend}")
        A(f"  s_cbranch_scc1 L_ld_loop{tag}")
        A(f"  s_branch L_ld_next{tag}")
        A(f"L_ld_slow{tag}:")
        A("  s_waitcnt vmcnt(0)")
        A(f"  s_max_u32 s{SPUB}, s{SPUB}, s{SJ}")
        publish()
        A(f"L_ld_slow2{tag}:")
        budget()
        A("  s_sleep 1")
        A("  ds_read_b32 v6, v5")
        A("  s_waitcnt lgkmcnt(0)")
        A(f"  v_readfirstlane_b32 s{SG}, v6")
        A(f"  s_lshr_b32 s{ST}, s{SJ}, 3")
        A(f"  s_cmp_ge_u32 s{SG}, s{ST}")
        A(f"  s_cbranch_scc0 L_ld_slow2{tag}")
        A(f"  s_branch L_ld_go{tag}")
        A(f"L_ld_next{tag}:")

    ld_loop("K", W, NT // 2, "s[8:11]")
    A(f"  s_mov_b32 s{SMO}, 0")
    st = sorted([tuple(int(x) for x in e.split(":")) for e in sched.split(",") if e], reverse=True)
    ends = [NT - n for n, _ in st] + [NT]
    wins = [W] + [w for _, w in st]
    for k, (e, w) in enumerate(zip(ends, wins)):
        ld_loop("ABCDEF"[k], w, e, "s[12:15]")
    nrem = (max(wins) + 15) // 16 + 1
    for k in range(nrem - 1, -1, -1):
        A(f"  s_waitcnt vmcnt({min(63, 16 * k)})")
        A(f"  s_max_u32 s{SPUB}, s{SPUB}, {NT - k}")
        publish()
    A("  s_waitcnt lgkmcnt(0)")
    if stamps:
        A("  s_lshl_b32 s95, s2, 8")
        A(f"  s_add_u32 s95, s95, {WS_DBG + 3 * 0x100000}")
        A("  v_lshlrev_b32 v11, 2, v0")
        A("  buffer_store_dword v10, v11, s[44:47], s95 offen")
    stamp(0)
    A("  s_endpgm")

    def wave_allsum(v, t, s0, rors=(1, 2, 4, 8)):
        for r in rors:
            A("  s_nop 1")
            A(f"  v_add_f32_dpp v{v}, v{v}, v{v} row_ror:{r} row_mask:0xf bank_mask:0xf")
        A("  s_nop 0")
        for k in range(4):
            A(f"  v_readlane_b32 s{s0 + k}, v{v}, {16 * k}")
        A("  s_nop 1")
        A(f"  v_mov_b32 v{v}, s{s0}")
        A(f"  v_mov_b32 v{t}, s{s0 + 2}")
        A(f"  v_add_f32 v{v}, s{s0 + 1}, v{v}")
        A(f"  v_add_f32 v{t}, s{s0 + 3}, v{t}")
        A(f"  v_add_f32 v{v}, v{v}, v{t}")

    def rnd1(v):
        A(f"  v_cvt_pk_bf16_f32 v{v}, 0, v{v}")

    def layernorm(xr, xnbase_sgpr):
        X = 8
        for k in range(4):
            A(f"  v_lshlrev_b32 v{X + 2 * k}, 16, v{xr + k}")
            A(f"  v_and_b32 v{X + 2 * k + 1}, 0xffff0000, v{xr + k}")
        A(f"  v_add_f32 v16, v{X}, v{X+1}")
        A(f"  v_add_f32 v17, v{X+2}, v{X+3}")
        A(f"  v_add_f32 v18, v{X+4}, v{X+5}")
        A(f"  v_add_f32 v19, v{X+6}, v{X+7}")
        A("  v_add_f32 v16, v16, v17")
        A("  v_add_f32 v18, v18, v19")
        A("  v_add_f32 v16, v16, v18")
        wave_allsum(16, 17, 60)
        A("  v_mul_f32 v16, 0x3b000000, v16")
        A("  v_mov_b32 v18, 0")
        for k in range(8):
            A(f"  v_sub_f32 v19, v{X + k}, v16")
            A("  v_fmac_f32 v18, v19, v19")
        wave_allsum(18, 17, 60)
        A("  v_mul_f32 v18, 0x3b000000, v18")
        rnd1(16)
        rnd1(18)
        A(f"  v_add_f32 v18, {hex(EPS)}, v18")
        rnd1(18)
        A("  v_sqrt_f32 v18, v18")
        A("  s_nop 0")
        rnd1(18)
        A("  v_rcp_f32 v19, v18")
        for k in range(8):
            A(f"  v_sub_f32 v{X + k}, v{X + k}, v16")
        for k in range(8):
            rnd1(X + k)
        for k in range(8):
            A(f"  v_mul_f32 v{20 + k}, v{X + k}, v19")
        for k in range(8):
            A(f"  v_fma_f32 v{X + k}, -v{20 + k}, v18, v{X + k}")
        for k in range(8):
            A(f"  v_fma_f32 v{20 + k}, v{X + k}, v19, v{20 + k}")
        for k in range(8):
            rnd1(20 + k)
        A("  v_lshlrev_b32 v16, 5, v0")
        A(f"  v_add_u32 v16, s{xnbase_sgpr}, v16")
        A("  ds_write_b128 v16, v[20:23]")
        A("  ds_write_b128 v16, v[24:27] offset:16")

    def gemv_acc(acc, wreg, lo, hi):
        for k in range(4):
            A(f"  v_dot2c_f32_bf16 v{acc + 2 * k}, v{lo}, v{wreg + k}")
            A(f"  v_dot2c_f32_bf16 v{acc + 2 * k + 1}, v{hi}, v{wreg + k}")

    def wait_lds_ge(tag, addr, thr, slp=8):
        A(f"  v_mov_b32 v191, {addr}")
        A(f"L_wl_{tag}:")
        budget()
        A(f"  s_sleep {slp}")
        A("  ds_read_b32 v1, v191")
        A("  s_waitcnt lgkmcnt(0)")
        A("  v_readfirstlane_b32 s75, v1")
        A(f"  s_cmp_ge_u32 s75, {thr}")
        A(f"  s_cbranch_scc0 L_wl_{tag}")

    def slot_offsets():
        A("  s_lshl_b32 s82, s7, 10")
        A(f"  s_add_u32 s80, s82, {WS_PO}")
        A(f"  s_add_u32 s82, s82, {WS_YZ}")

    A("L_notloader:")
    A("  s_cmp_eq_u32 s3, 5")
    A("  s_cbranch_scc1 L_helper")

    srd(8, 16, 1024)
    srd(12, 22, 512 * 4096 * 2)
    A("  buffer_load_dwordx4 v[28:31], v2, s[8:11], 0 offen nt")
    A("  s_sub_u32 s6, s3, 1")
    A("  v_lshrrev_b32 v4, 4, v0")
    A("  v_and_b32 v5, 15, v0")
    A("  v_lshlrev_b32 v6, 13, v4")
    A("  v_lshl_add_u32 v6, v5, 4, v6")
    A("  s_lshl_b32 s56, s6, 20")
    A("  s_lshl_b32 s57, s4, 8")
    A("  s_add_u32 s56, s56, s57")
    for i in range(32):
        A(f"  buffer_load_dwordx4 v[{32 + 4 * i}:{35 + 4 * i}], v6, s[12:15], s56 offen nt")
        A("  s_add_u32 s56, s56, 32768")
    A("  s_barrier")
    ws_srd()
    srd(48, 24, 4096 * 512 * 2)
    srd(52, 36, 1024)
    A("  s_lshl_b32 s74, s6, 11")
    A(f"  s_add_u32 s74, s74, {XN}")
    A("  s_waitcnt vmcnt(32)")
    layernorm(28, 74)
    A("  s_lshl_b32 s57, s6, 9")
    A("  s_add_u32 s57, s57, s74")
    A("  v_lshlrev_b32 v3, 2, v4")
    A("  v_add_u32 v3, s57, v3")
    for k in range(8):
        A(f"  v_mov_b32 v{8 + k}, 0")
    A("  s_waitcnt lgkmcnt(0)")
    for blk in range(4):
        for i in range(8):
            A(f"  ds_read_b32 v{16 + i}, v3 offset:{(blk * 8 + i) * 16}")
        for i in range(8):
            ii = blk * 8 + i
            A(f"  s_waitcnt vmcnt({31 - ii}) lgkmcnt({7 - i})")
            A(f"  v_lshrrev_b32 v24, 16, v{16 + i}")
            gemv_acc(8, 32 + 4 * ii, 24, 16 + i)
    A("  s_lshl_b32 s57, s6, 11")
    A(f"  s_add_u32 s57, s57, {PART}")
    A("  v_lshlrev_b32 v176, 5, v0")
    A("  v_add_u32 v176, s57, v176")
    A("  s_nop 0")
    A(f"  ds_write_b128 v176, v[8:11] offset:{QPART - PART}")
    A(f"  ds_write_b128 v176, v[12:15] offset:{QPART - PART + 16}")
    A(f"  v_mov_b32 v16, {QCNT}")
    A("  v_mov_b32 v17, 1")
    A("  s_waitcnt lgkmcnt(0)")
    A("  s_mov_b64 exec, 1")
    A("  ds_add_u32 v16, v17")
    A("  s_mov_b64 exec, -1")
    A("  v_lshlrev_b32 v177, 3, v0")
    A(f"  v_add_u32 v177, {PART}, v177")
    A("L_c_qwait:")
    budget()
    A("  ds_read_b32 v17, v16")
    A("  s_waitcnt lgkmcnt(0)")
    A("  v_readfirstlane_b32 s57, v17")
    A("  s_cmp_ge_u32 s57, 4")
    A("  s_cbranch_scc0 L_c_qwait")
    for p in range(16):
        A(f"  ds_read_b64 v[{32 + 2 * p}:{33 + 2 * p}], v177 offset:{QPART - PART + p * 512}")
    A("  s_waitcnt lgkmcnt(0)")
    for step in (8, 4, 2, 1):
        for p in range(step):
            A(f"  v_add_f32 v{32 + 2 * p}, v{32 + 2 * p}, v{32 + 2 * (p + step)}")
            A(f"  v_add_f32 v{33 + 2 * p}, v{33 + 2 * p}, v{33 + 2 * (p + step)}")
    A("  v_cvt_pk_bf16_f32 v32, v32, v33")
    A("  s_lshl_b32 s57, s6, 8")
    A(f"  s_add_u32 s57, s57, {QBUF}")
    A("  v_lshlrev_b32 v16, 2, v0")
    A("  v_add_u32 v16, s57, v16")
    A("  ds_write_b32 v16, v32")
    A("  v_lshlrev_b32 v16, 4, v5")
    A("  v_add_u32 v16, s57, v16")
    A("  s_waitcnt lgkmcnt(0)")
    A("  ds_read_b128 v[4:7], v16")
    slot_offsets()
    ACC, VL, VM = 8, 16, 17
    D = 32
    S = 96
    for k in range(8):
        A(f"  v_mov_b32 v{ACC + k}, 0")
    A(f"  v_mov_b32 v{VL}, 0")
    A(f"  v_mov_b32 v{VM}, 0xff800000")
    A(f"  v_mov_b32 v19, {LANDED}")
    A("  v_lshrrev_b32 v18, 2, v0")
    A("  v_lshlrev_b32 v18, 3, v18")
    A("  s_lshl_b32 s57, s6, 7")
    A(f"  s_add_u32 s57, s57, {SC}")
    A("  v_add_u32 v18, s57, v18")
    A(f"  s_mov_b32 s60, {hex(LOG2E)}")
    A(f"  s_mov_b32 s61, {hex(SCALE)}")
    A("  s_mov_b32 s62, 0xffff0000")
    STI = 63
    A(f"  s_mov_b32 s{STI}, s6")
    A("  s_waitcnt lgkmcnt(0)")
    stamp(1)

    def tile_fetch(tag, extra=None):
        A(f"L_c_loop{tag}:")
        A("  ds_read_b32 v30, v19")
        A(f"  s_and_b32 s64, s{STI}, {NSLOT - 1}")
        A("  s_lshl_b32 s65, s64, 14")
        A("  v_add_u32 v29, s65, v2")
        A("  s_waitcnt lgkmcnt(0)")
        A("  v_readfirstlane_b32 s57, v30")
        A(f"  s_cmp_gt_u32 s57, s{STI}")
        A(f"  s_cbranch_scc1 L_c_go{tag}")
        budget()
        A(f"  s_sleep {sleep_c}")
        A(f"  s_branch L_c_loop{tag}")
        A(f"L_c_go{tag}:")
        if extra:
            extra()
        for i in range(14):
            A(f"  ds_read_b128 v[{D + 4 * i}:{D + 4 * i + 3}], v29 offset:{i * 1024}")
        A("  s_lshl_b32 s64, s64, 2")
        A(f"  s_add_u32 s64, s64, {GEN}")
        A(f"  s_lshr_b32 s65, s{STI}, 3")
        A("  s_add_u32 s65, s65, 1")
        A("  v_mov_b32 v30, s64")
        A("  v_mov_b32 v31, s65")

    def qk_half(h):
        s = S + 8 * h
        d = D + 32 * h
        for i in range(8):
            A(f"  v_dot2_f32_bf16 v{s + i}, v{d + 4 * i}, v4, 0")
        for k in range(1, 4):
            for i in range(8):
                A(f"  v_dot2_f32_bf16 v{s + i}, v{d + 4 * i + k}, v{4 + k}, v{s + i}")

    tile_fetch("K")
    A("  s_waitcnt lgkmcnt(6)")
    for i in (14, 15):
        A(f"  ds_read_b128 v[{D + 4 * i}:{D + 4 * i + 3}], v29 offset:{i * 1024}")
    qk_half(0)
    A("  s_waitcnt lgkmcnt(0)")
    A("  ds_write_b32 v30, v31")
    qk_half(1)
    A("  s_nop 0")
    for j in range(8):
        A(f"  v_add_f32_dpp v{S + 2 * j}, v{S + 2 * j}, v{S + 2 * j} row_ror:8 row_mask:0xf bank_mask:0x3")
    for j in range(8):
        A(f"  v_add_f32_dpp v{S + 2 * j}, v{S + 2 * j + 1}, v{S + 2 * j + 1} row_ror:8 row_mask:0xf bank_mask:0xc")
    U = [S, S + 4, S + 8, S + 12]
    for u in U:
        A(f"  v_add_f32_dpp v{u}, v{u}, v{u} row_half_mirror row_mask:0xf bank_mask:0x5")
    for u in U:
        A(f"  v_add_f32_dpp v{u}, v{u + 2}, v{u + 2} row_half_mirror row_mask:0xf bank_mask:0xa")
    for u in U:
        A(f"  v_add_f32_dpp v{u}, v{u}, v{u} quad_perm:[1,0,3,2] row_mask:0xf bank_mask:0xf")
    for u in U:
        A(f"  v_add_f32_dpp v{u}, v{u}, v{u} quad_perm:[2,3,0,1] row_mask:0xf bank_mask:0xf")
    for u in U:
        A(f"  v_cvt_pk_bf16_f32 v{u}, 0, v{u}")
    for u in U:
        A(f"  v_mul_f32 v{u}, s61, v{u}")
    A(f"  v_cvt_pk_bf16_f32 v20, v{U[0]}, v{U[1]}")
    A(f"  v_cvt_pk_bf16_f32 v21, v{U[2]}, v{U[3]}")
    A("  ds_write_b64 v18, v[20:21]")
    A("  v_lshlrev_b32 v22, 16, v20")
    A("  v_and_b32 v23, s62, v20")
    A("  v_lshlrev_b32 v24, 16, v21")
    A("  v_and_b32 v25, s62, v21")
    A("  v_add_u32 v18, 512, v18")
    A("  v_max_f32 v26, v22, v23")
    A("  v_max3_f32 v26, v24, v25, v26")
    A(f"  v_cmp_gt_f32 vcc, v26, v{VM}")
    A("  s_cbranch_vccnz L_c_newmax")
    A("L_c_cont:")
    for r in (22, 23, 24, 25):
        A(f"  v_sub_f32 v{r}, v{r}, v{VM}")
    for r in (22, 23, 24, 25):
        A(f"  v_mul_f32 v{r}, s60, v{r}")
    for r in (22, 23, 24, 25):
        A(f"  v_exp_f32 v{r}, v{r}")
    A(f"  s_add_u32 s{STI}, s{STI}, 4")
    A("  v_add_f32 v22, v22, v23")
    A("  v_add_f32 v24, v24, v25")
    A(f"  s_cmp_lt_u32 s{STI}, {NT // 2}")
    A("  v_add_f32 v22, v22, v24")
    A(f"  v_add_f32 v{VL}, v{VL}, v22")
    A("  s_cbranch_scc1 L_c_loopK")
    A("  s_branch L_c_mid")
    A("L_c_newmax:")
    A("  s_nop 0")
    A("  v_max_f32_dpp v26, v26, v26 row_ror:4 row_mask:0xf bank_mask:0xf")
    A("  s_nop 1")
    A("  v_max_f32_dpp v26, v26, v26 row_ror:8 row_mask:0xf bank_mask:0xf")
    A("  s_nop 0")
    for k in range(4):
        A(f"  v_readlane_b32 s{64 + k}, v26, {16 * k}")
    A(f"  v_mov_b32 v27, v{VM}")
    A("  s_nop 0")
    for k in range(4):
        A(f"  v_max_f32 v{VM}, s{64 + k}, v{VM}")
    A(f"  v_sub_f32 v27, v27, v{VM}")
    A("  v_mul_f32 v27, s60, v27")
    A("  v_exp_f32 v27, v27")
    A("  s_nop 0")
    A(f"  v_mul_f32 v{VL}, v{VL}, v27")
    A("  s_branch L_c_cont")

    A("L_c_mid:")
    wave_allsum(VL, 20, 64, rors=(4, 8))
    A("  s_lshl_b32 s57, s6, 3")
    A(f"  s_add_u32 s57, s57, {WML}")
    A("  v_mov_b32 v22, s57")
    A(f"  v_mov_b32 v20, v{VM}")
    A(f"  v_mov_b32 v21, v{VL}")
    A("  ds_write_b64 v22, v[20:21]")
    A(f"  v_mov_b32 v22, {MCNT}")
    A("  v_mov_b32 v23, 1")
    A(f"  v_subrev_u32 v18, {32 * 512}, v18")
    A("  s_waitcnt lgkmcnt(0)")
    A("  s_mov_b64 exec, 1")
    A("  ds_add_u32 v22, v23")
    A("  s_mov_b64 exec, -1")
    A(f"  v_mov_b32 v22, {GOK}")
    A("L_c_gwait:")
    budget()
    A("  s_sleep 1")
    A("  ds_read_b128 v[24:27], v22")
    A("  s_waitcnt lgkmcnt(0)")
    A("  v_readfirstlane_b32 s57, v24")
    A("  s_cmp_eq_u32 s57, 1")
    A("  s_cbranch_scc0 L_c_gwait")
    A(f"  v_mov_b32 v{VM}, v25")
    A(f"  v_mov_b32 v{VL}, v26")
    ts(7)

    tile_fetch("V", extra=lambda: A("  ds_read_b64 v[20:21], v18"))
    A("  s_waitcnt lgkmcnt(13)")
    for i in (14, 15):
        A(f"  ds_read_b128 v[{D + 4 * i}:{D + 4 * i + 3}], v29 offset:{i * 1024}")
    A("  v_lshlrev_b32 v22, 16, v20")
    A("  v_and_b32 v23, s62, v20")
    A("  v_lshlrev_b32 v24, 16, v21")
    A("  v_and_b32 v25, s62, v21")
    A("  v_add_u32 v18, 512, v18")
    for r in (22, 23, 24, 25):
        A(f"  v_sub_f32 v{r}, v{r}, v{VM}")
    for r in (22, 23, 24, 25):
        A(f"  v_mul_f32 v{r}, s60, v{r}")
    for r in (22, 23, 24, 25):
        A(f"  v_exp_f32 v{r}, v{r}")
    A("  s_nop 0")
    for r in (22, 23, 24, 25):
        A(f"  v_mul_f32 v{r}, v{r}, v{VL}")
    for k, r in enumerate((22, 23, 24, 25)):
        A(f"  v_cvt_pk_bf16_f32 v{S + 2 * k}, v{r}, 0")
        A(f"  v_cvt_pk_bf16_f32 v{S + 2 * k + 1}, 0, v{r}")
    bank_of = {0: 0, 2: 1, 1: 2, 3: 3}
    for i in range(16):
        if i == 0:
            A("  s_waitcnt lgkmcnt(8)")
        if i == 8:
            A("  s_waitcnt lgkmcnt(0)")
            A("  ds_write_b32 v30, v31")
        pl, ph = S + 2 * (i // 4), S + 2 * (i // 4) + 1
        b = bank_of[i % 4]
        for k in range(4):
            A(f"  v_dot2c_f32_bf16_dpp v{ACC + 2 * k}, v{pl}, v{D + 4 * i + k} row_newbcast:{4 * b} row_mask:0xf bank_mask:0xf")
            A(f"  v_dot2c_f32_bf16_dpp v{ACC + 2 * k + 1}, v{ph}, v{D + 4 * i + k} row_newbcast:{4 * b} row_mask:0xf bank_mask:0xf")
    A(f"  s_add_u32 s{STI}, s{STI}, 4")
    A(f"  s_cmp_lt_u32 s{STI}, {NT}")
    A("  s_cbranch_scc1 L_c_loopV")

    stamp(2)
    A("  v_and_b32 v28, 7, v0")
    A("  v_lshlrev_b32 v29, 12, v28")
    A("  v_lshrrev_b32 v27, 3, v0")
    A("  v_lshl_add_u32 v29, v27, 4, v29")
    A(f"  ds_write_b128 v176, v[{ACC}:{ACC + 3}]")
    A(f"  ds_write_b128 v176, v[{ACC + 4}:{ACC + 7}] offset:16")
    A("  s_lshl_b32 s56, s4, 17")
    A("  s_lshl_b32 s57, s6, 15")
    A("  s_add_u32 s56, s56, s57")
    A("  s_lshl_b32 s57, s5, 7")
    A("  s_add_u32 s56, s56, s57")
    for i in range(4):
        A(f"  buffer_load_dwordx4 v[{160 + 4 * i}:{163 + 4 * i}], v29, s[48:51], s56 offen offset:{i * 1024} nt")
    A("  v_lshlrev_b32 v20, 2, v27")
    A(f"  v_add_u32 v20, {EL}, v20")
    A("  ds_read_b32 v178, v20")
    A(f"  v_mov_b32 v20, {FIN}")
    A("  ds_read_b32 v182, v20 offset:16")
    A("  ds_read_b128 v[184:187], v20")
    A("  v_and_b32 v22, 31, v0")
    A("  v_lshlrev_b32 v22, 2, v22")
    A(f"  v_add_u32 v22, {EL + 64}, v22")
    A("  ds_read_b32 v183, v22")
    A("  v_lshlrev_b32 v21, 10, v27")
    A("  v_lshl_add_u32 v21, v28, 5, v21")
    A("  s_lshl_b32 s56, s4, 13")
    A("  s_lshl_b32 s57, s6, 8")
    A("  s_add_u32 s56, s56, s57")
    A(f"  s_add_u32 s56, s56, {WS_PO}")
    A("  s_waitcnt lgkmcnt(0)")
    A("  s_barrier")
    ts(0)
    A("  s_cmp_lg_u32 s6, 0")
    A("  s_cbranch_scc1 L_e_poll1")
    for p in range(16):
        A(f"  ds_read_b64 v[{32 + 2 * p}:{33 + 2 * p}], v177 offset:{p * 512}")
    A("  v_mov_b32 v65, v182")
    A("  v_mov_b32 v67, v182")
    A("  s_waitcnt lgkmcnt(0)")
    for step in (8, 4, 2):
        for p in range(step):
            A(f"  v_add_f32 v{32 + 2 * p}, v{32 + 2 * p}, v{32 + 2 * (p + step)}")
            A(f"  v_add_f32 v{33 + 2 * p}, v{33 + 2 * p}, v{33 + 2 * (p + step)}")
    A("  v_add_f32 v64, v32, v34")
    A("  v_add_f32 v66, v33, v35")
    A("  buffer_store_dwordx4 v[64:67], v2, s[44:47], s80 offen sc0 sc1")
    ts(1)
    A("L_e_poll1:")
    A("  buffer_load_dwordx4 v[32:35], v21, s[44:47], s56 offen sc0 sc1")
    A("  buffer_load_dwordx4 v[36:39], v21, s[44:47], s56 offen offset:16 sc0 sc1")
    A("  s_waitcnt vmcnt(0)")
    A("  v_xor_b32 v22, v33, v178")
    A("  v_xor_b32 v23, v35, v178")
    A("  v_xor_b32 v24, v37, v178")
    A("  v_xor_b32 v25, v39, v178")
    A("  v_or_b32 v22, v22, v23")
    A("  v_or3_b32 v22, v24, v25, v22")
    A("  v_cmp_ne_u32 vcc, 0, v22")
    A("  s_cbranch_vccz L_e_got1")
    budget()
    if psleep:
        A(f"  s_sleep {psleep}")
    A("  s_branch L_e_poll1")
    A("L_e_got1:")
    ts(2)
    O = (32, 34, 36, 38)
    for o in O:
        A(f"  v_add_f32_dpp v{o}, v{o}, v{o} row_ror:8 row_mask:0xf bank_mask:0xf")
    for o in O:
        A(f"  v_mov_b32 v{o + 1}, v{o}")
    A("  s_nop 0")
    for o in O:
        A(f"  v_permlane16_swap_b32 v{o}, v{o + 1}")
    for o in O:
        A(f"  v_add_f32 v{o}, v{o}, v{o + 1}")
    for o in O:
        A(f"  v_mov_b32 v{o + 1}, v{o}")
    A("  s_nop 0")
    for o in O:
        A(f"  v_permlane32_swap_b32 v{o}, v{o + 1}")
    for o in O:
        A(f"  v_add_f32 v{o}, v{o}, v{o + 1}")
    for k in range(8):
        A(f"  v_mov_b32 v{8 + k}, 0")
    for i, o in enumerate(O):
        A(f"  v_cvt_pk_bf16_f32 v{40 + i}, v{o}, 0")
        A(f"  v_cvt_pk_bf16_f32 v{44 + i}, 0, v{o}")
    for i in range(4):
        gemv_acc(8, 160 + 4 * i, 40 + i, 44 + i)
    A("  v_lshlrev_b32 v20, 5, v27")
    A("  s_lshl_b32 s57, s6, 8")
    A(f"  s_add_u32 s57, s57, {YP}")
    A("  v_add_u32 v20, s57, v20")
    for k in range(8):
        A(f"  v_add_f32_dpp v{8 + k}, v{8 + k}, v{8 + k} quad_perm:[1,0,3,2] row_mask:0xf bank_mask:0xf")
    for k in range(8):
        A(f"  v_add_f32_dpp v{8 + k}, v{8 + k}, v{8 + k} quad_perm:[2,3,0,1] row_mask:0xf bank_mask:0xf")
    for k in range(8):
        A(f"  v_add_f32_dpp v{8 + k}, v{8 + k}, v{8 + k} row_half_mirror row_mask:0xf bank_mask:0xf")
    A("  s_mov_b32 s58, 0x01010101")
    A("  s_mov_b32 s59, 0x01010101")
    A("  s_mov_b64 exec, s[58:59]")
    A("  ds_write_b128 v20, v[8:11]")
    A("  ds_write_b128 v20, v[12:15] offset:16")
    A("  s_mov_b64 exec, -1")
    A("  v_lshlrev_b32 v20, 2, v0")
    A(f"  v_add_u32 v21, {YP}, v20")
    A("  s_waitcnt lgkmcnt(0)")
    ts(3)
    A("  s_barrier")
    ts(4)
    A("  s_cmp_lg_u32 s6, 0")
    A("  s_cbranch_scc1 L_end")
    for p in range(4):
        A(f"  ds_read_b32 v{32 + p}, v21 offset:{p * 256}")
    A(f"  v_add_u32 v22, {ZB}, v20")
    A("  ds_read_b32 v66, v22")
    A("  v_and_b32 v22, 31, v0")
    A("  v_lshlrev_b32 v22, 13, v22")
    A("  v_lshrrev_b32 v23, 5, v0")
    A("  v_lshl_add_u32 v22, v23, 4, v22")
    A("  s_lshl_b32 s56, s5, 10")
    A("  s_lshl_b32 s57, s4, 5")
    A("  s_add_u32 s56, s56, s57")
    A(f"  s_add_u32 s56, s56, {WS_YZ}")
    A("  s_waitcnt lgkmcnt(0)")
    A("  v_add_f32 v32, v32, v33")
    A("  v_add_f32 v34, v34, v35")
    A("  v_add_f32 v64, v32, v34")
    A("  buffer_store_dwordx4 v[64:67], v2, s[44:47], s82 offen sc0 sc1")
    ts(5)
    A("L_e_poll2:")
    A("  buffer_load_dwordx4 v[8:11], v22, s[44:47], s56 offen sc0 sc1")
    A("  s_waitcnt vmcnt(0)")
    A("  v_xor_b32 v12, v9, v183")
    A("  v_xor_b32 v13, v11, v183")
    A("  v_or_b32 v12, v12, v13")
    A("  v_cmp_ne_u32 vcc, 0, v12")
    A("  s_cbranch_vccz L_e_got2")
    budget()
    if psleep:
        A(f"  s_sleep {psleep}")
    A("  s_branch L_e_poll2")
    A("L_e_got2:")
    ts(6)
    for r in (1, 2, 4, 8):
        A(f"  v_add_f32_dpp v8, v8, v8 row_ror:{r} row_mask:0xf bank_mask:0xf")
        A(f"  v_add_f32_dpp v10, v10, v10 row_ror:{r} row_mask:0xf bank_mask:0xf")
        A("  s_nop 0")
    for k in range(4):
        A(f"  v_readlane_b32 s{60 + k}, v8, {16 * k}")
    for k in range(4):
        A(f"  v_readlane_b32 s{64 + k}, v10, {16 * k}")
    A("  s_nop 0")
    A("  v_mov_b32 v8, s60")
    A("  v_mov_b32 v9, s62")
    A("  v_mov_b32 v10, s64")
    A("  v_mov_b32 v11, s66")
    A("  v_add_f32 v8, s61, v8")
    A("  v_add_f32 v9, s63, v9")
    A("  v_add_f32 v10, s65, v10")
    A("  v_add_f32 v11, s67, v11")
    for r in (8, 9, 10, 11):
        rnd1(r)
    for k in range(4):
        A(f"  v_add_f32 v{8 + k}, v{184 + k}, v{8 + k}")
    for r in (8, 9, 10, 11):
        rnd1(r)
    A("  v_add_f32 v8, v8, v10")
    A("  v_add_f32 v9, v9, v11")
    A("  v_cvt_pk_bf16_f32 v8, v8, v9")
    A("  s_lshl_b32 s56, s5, 7")
    A("  s_lshl_b32 s57, s4, 2")
    A("  s_add_u32 s56, s56, s57")
    A("  v_mov_b32 v9, 0")
    A("  s_mov_b64 exec, 1")
    A("  buffer_store_dword v8, v9, s[52:55], s56 offen")
    if stamps:
        A("  s_waitcnt lgkmcnt(0)")
        for k in range(8):
            A(f"  v_mov_b32 v{200 + k}, s{20 + 2 * k}")
        A("  s_lshl_b32 s95, s2, 5")
        A(f"  s_add_u32 s95, s95, {WS_DBG + 4 * 0x100000}")
        A("  buffer_store_dwordx4 v[200:203], v9, s[44:47], s95 offen")
        A("  buffer_store_dwordx4 v[204:207], v9, s[44:47], s95 offen offset:16")
    A("  s_mov_b64 exec, -1")
    stamp(0)
    A("  s_endpgm")

    A("L_helper:")
    A("  v_lshlrev_b32 v3, 2, v0")
    A(f"  v_add_u32 v4, {CTRL}, v3")
    A("  v_mov_b32 v5, 0")
    A("  ds_write_b32 v4, v5")
    A("  s_waitcnt lgkmcnt(0)")
    A("  s_barrier")
    for k in range(4):
        A(f"  v_mov_b32 v{8 + k}, -1")
    ws_srd()
    srd(8, 16, 1024)
    srd(12, 28, 512 * 1792 * 2)
    srd(48, 32, 1792 * 512 * 2)
    srd(52, 30, 1792 * 2)
    srd(64, 34, 1024)
    srd(68, 38, 256)
    slot_offsets()
    wait_lds_ge("h0", LANDED, hstart)
    A("  s_cmp_lg_u32 s2, 0")
    A("  s_cbranch_scc1 L_h_noclear")
    A("  s_mov_b32 s57, 0")
    for i in range(WS_RESET // 4096):
        for k in range(4):
            A(f"  buffer_store_dwordx4 v[8:11], v2, s[44:47], s57 offen offset:{k * 1024} sc0 sc1")
        A("  s_add_u32 s57, s57, 4096")
    A("  s_waitcnt vmcnt(0)")
    A("  v_mov_b32 v5, 0")
    A("  v_mov_b32 v6, 1")
    A("  s_mov_b64 exec, 1")
    A("  buffer_store_dword v6, v5, s[68:71], 0 offen sc0 sc1")
    A("  s_mov_b64 exec, -1")
    A("L_h_noclear:")
    A("  v_mov_b32 v5, 0")
    A("  buffer_load_dwordx4 v[96:99], v2, s[44:47], s80 offen sc0 sc1 nt")
    A("  buffer_load_dwordx4 v[100:103], v2, s[44:47], s82 offen sc0 sc1 nt")
    A("  buffer_load_dwordx4 v[28:31], v2, s[8:11], 0 offen nt")
    A("  v_lshlrev_b32 v7, 1, v0")
    A("  s_mul_i32 s72, s4, 112")
    A("  buffer_load_ushort v188, v7, s[52:55], s72 offen nt")
    A("  s_lshl_b32 s72, s5, 7")
    A("  s_lshl_b32 s73, s4, 2")
    A("  s_add_u32 s72, s72, s73")
    A("  buffer_load_dword v189, v5, s[8:11], s72 offen nt")
    A("  buffer_load_dword v190, v5, s[64:67], s72 offen nt")
    A("  v_lshrrev_b32 v4, 3, v0")
    A("  v_and_b32 v5, 7, v0")
    A("  v_mul_u32_u24 v6, 3584, v4")
    A("  v_lshlrev_b32 v7, 4, v5")
    A("  v_add_u32 v6, v6, v7")
    A("  v_lshlrev_b32 v7, 10, v4")
    A("  v_lshl_add_u32 v7, v5, 4, v7")
    A("  s_mul_i32 s59, s4, 112")
    A("  s_mul_i32 s76, s4, 57344")
    A("  s_lshl_b32 s73, s5, 7")
    A("  s_add_u32 s76, s76, s73")
    A(f"  s_mov_b32 s74, {HXN}")
    A("  s_waitcnt vmcnt(0)")
    A("  v_readfirstlane_b32 s84, v97")
    A("L_h_ep:")
    A("  s_add_u32 s84, s84, 1")
    A("  s_cmp_eq_u32 s84, -1")
    A("  s_cbranch_scc1 L_h_ep")
    A("  s_mov_b64 s[86:87], 0")
    for r in (97, 99, 101, 103):
        A(f"  v_cmp_eq_u32 vcc, s84, v{r}")
        A("  s_or_b64 s[86:87], s[86:87], vcc")
    A("  s_cmp_lg_u64 s[86:87], 0")
    A("  s_cbranch_scc1 L_h_ep")
    layernorm(28, 74)
    A("  v_lshlrev_b32 v5, 2, v4")
    A("  v_add_u32 v5, s74, v5")
    for k in range(8):
        A(f"  v_mov_b32 v{8 + k}, 0")
    A("  s_waitcnt lgkmcnt(0)")
    HW = hwin

    def h_issue(n):
        if n < 64:
            r = 32 + 4 * (n % HW)
            A(f"  buffer_load_dwordx4 v[{r}:{r + 3}], v6, s[12:15], s59 offen nt")
            A(f"  s_add_u32 s59, s59, {8 * 3584}")
        elif n < 71:
            r = 128 + 4 * (n - 64)
            A(f"  buffer_load_dwordx4 v[{r}:{r + 3}], v7, s[48:51], s76 offen nt")
            A("  s_add_u32 s76, s76, 8192")

    for n in range(HW):
        h_issue(n)
    for blk in range(8):
        for i in range(8):
            A(f"  ds_read_b32 v{16 + i}, v5 offset:{(blk * 8 + i) * 32}")
        for i in range(8):
            n = blk * 8 + i
            A(f"  s_waitcnt vmcnt({HW - 1}) lgkmcnt({7 - i})")
            A(f"  v_lshrrev_b32 v24, 16, v{16 + i}")
            gemv_acc(8, 32 + 4 * (n % HW), 24, 16 + i)
            h_issue(n + HW)
    for n in range(64 + HW, 71):
        h_issue(n)
    A("  v_lshlrev_b32 v5, 5, v0")
    A(f"  v_add_u32 v5, {HPART}, v5")
    A("  s_nop 1")
    A("  ds_write_b128 v5, v[8:11]")
    A("  ds_write_b128 v5, v[12:15] offset:16")
    A(f"  v_add_u32 v7, {HPART}, v3")
    A("  s_waitcnt lgkmcnt(0)")
    for g in range(8):
        A(f"  ds_read_b32 v{16 + g}, v7 offset:{g * 256}")
    A("  s_waitcnt lgkmcnt(0)")
    for a, b in ((16, 17), (18, 19), (20, 21), (22, 23), (16, 18), (20, 22), (16, 20)):
        A(f"  v_add_f32 v{a}, v{a}, v{b}")
    rnd1(16)
    A("  v_lshlrev_b32 v17, 16, v188")
    A("  v_add_f32 v16, v16, v17")
    rnd1(16)
    A("  v_cmp_lt_f32 vcc, 0, v16")
    A("  s_nop 1")
    A("  v_cndmask_b32 v16, 0, v16, vcc")
    A("  v_mul_f32 v16, v16, v16")
    rnd1(16)
    A(f"  v_add_u32 v17, {HID}, v3")
    A("  ds_write_b32 v17, v16")
    A("  v_lshlrev_b32 v17, 2, v4")
    A(f"  v_add_u32 v17, {HID}, v17")
    for k in range(8):
        A(f"  v_mov_b32 v{8 + k}, 0")
    A("  s_waitcnt lgkmcnt(0)")
    for i in range(7):
        A(f"  ds_read_b32 v{18 + i}, v17 offset:{i * 32}")
    A("  s_waitcnt vmcnt(0) lgkmcnt(0)")
    for i in range(7):
        A(f"  v_lshrrev_b32 v26, 16, v{18 + i}")
        gemv_acc(8, 128 + 4 * i, 26, 18 + i)
    A("  s_nop 2")
    A("  ds_write_b128 v5, v[8:11]")
    A("  ds_write_b128 v5, v[12:15] offset:16")
    A("  s_waitcnt lgkmcnt(0)")
    for g in range(8):
        A(f"  ds_read_b32 v{16 + g}, v7 offset:{g * 256}")
    A("  s_waitcnt lgkmcnt(0)")
    for a, b in ((16, 17), (18, 19), (20, 21), (22, 23), (16, 18), (20, 22), (16, 20)):
        A(f"  v_add_f32 v{a}, v{a}, v{b}")
    A(f"  v_add_u32 v17, {ZB}, v3")
    A("  ds_write_b32 v17, v16")
    A("  v_lshlrev_b32 v8, 16, v189")
    A("  v_and_b32 v9, 0xffff0000, v189")
    A("  v_lshlrev_b32 v10, 16, v190")
    A("  v_and_b32 v11, 0xffff0000, v190")
    A(f"  v_mov_b32 v5, {FIN}")
    A("  v_mov_b32 v12, s84")
    A("  ds_write_b128 v5, v[8:11]")
    A("  ds_write_b32 v5, v12 offset:16")
    wait_lds_ge("h1", LANDED, sig0)
    A("  v_mov_b32 v5, 0")
    A("  s_branch L_h_poll1")
    A("L_h_poll:")
    budget()
    A("  s_sleep 64")
    A("L_h_poll1:")
    A("  buffer_load_dword v6, v5, s[68:71], 0 offen sc0 sc1")
    A("  s_waitcnt vmcnt(0)")
    A("  v_readfirstlane_b32 s75, v6")
    A("  s_cmp_eq_u32 s75, 1")
    A("  s_cbranch_scc0 L_h_poll")
    A("  s_lshl_b32 s83, s2, 7")
    A("  s_mov_b64 exec, 1")
    A("  buffer_store_dword v12, v5, s[44:47], s83 offen sc0 sc1")
    A("  s_mov_b64 exec, -1")
    A("  v_mov_b32 v8, s4")
    A("  v_and_b32 v9, 7, v0")
    A("  v_subrev_u32 v10, 16, v0")
    A("  v_and_b32 v10, 31, v10")
    A("  v_mov_b32 v11, s5")
    A("  v_cmp_le_u32 vcc, 16, v0")
    A("  s_nop 1")
    A("  v_cndmask_b32 v8, v8, v10, vcc")
    A("  v_cndmask_b32 v9, v9, v11, vcc")
    A("  v_lshrrev_b32 v10, 2, v8")
    A("  v_and_b32 v11, 3, v8")
    A("  v_lshl_add_u32 v10, v11, 3, v10")
    A("  v_lshl_add_u32 v10, v9, 5, v10")
    A("  v_lshlrev_b32 v10, 7, v10")
    wait_lds_ge("hq", LANDED, qchk)
    A("  s_branch L_h_epoll1")
    A("L_h_epoll:")
    budget()
    A("  s_sleep 64")
    A("L_h_epoll1:")
    A("  buffer_load_dword v16, v10, s[44:47], 0 offen sc0 sc1 nt")
    A("  s_waitcnt vmcnt(0)")
    A("  v_cmp_eq_u32 vcc, -1, v16")
    A("  s_cbranch_vccnz L_h_epoll")
    A(f"  v_add_u32 v5, {EL}, v3")
    A("  ds_write_b32 v5, v16")
    wait_lds_ge("hm0", LANDED, NT // 2 - 2)
    wait_lds_ge("hm", MCNT, 4, slp=1)
    A(f"  v_mov_b32 v5, {WML}")
    A("  ds_read_b128 v[20:23], v5")
    A("  ds_read_b128 v[24:27], v5 offset:16")
    A(f"  s_mov_b32 s60, {hex(LOG2E)}")
    A("  v_mov_b32 v5, 0")
    A("  v_mov_b32 v29, s84")
    A("  v_mov_b32 v31, s84")
    A("  s_waitcnt lgkmcnt(0)")
    A("  v_max_f32 v28, v20, v22")
    A("  v_max3_f32 v28, v24, v26, v28")
    for r in (20, 22, 24, 26):
        A(f"  v_sub_f32 v{r}, v{r}, v28")
    for r in (20, 22, 24, 26):
        A(f"  v_mul_f32 v{r}, s60, v{r}")
    for r in (20, 22, 24, 26):
        A(f"  v_exp_f32 v{r}, v{r}")
    A("  s_nop 0")
    A("  v_mul_f32 v30, v20, v21")
    A("  v_fmac_f32 v30, v22, v23")
    A("  v_fmac_f32 v30, v24, v25")
    A("  v_fmac_f32 v30, v26, v27")
    A("  s_mov_b64 exec, 1")
    A("  buffer_store_dwordx4 v[28:31], v5, s[44:47], s83 offen offset:16 sc0 sc1")
    A("  s_mov_b64 exec, 0xffff")
    A("L_h_mpoll:")
    budget()
    A("  buffer_load_dwordx4 v[20:23], v10, s[44:47], 0 offen offset:16 sc0 sc1")
    A("  s_waitcnt vmcnt(0)")
    A("  v_xor_b32 v24, v21, v16")
    A("  v_xor_b32 v25, v23, v16")
    A("  v_or_b32 v24, v24, v25")
    A("  v_cmp_ne_u32 vcc, 0, v24")
    A("  s_cbranch_vccnz L_h_mpoll")
    A("  v_mov_b32 v24, v20")
    for r in (1, 2, 4):
        A("  s_nop 1")
        A(f"  v_max_f32_dpp v24, v24, v24 row_ror:{r} row_mask:0xf bank_mask:0xf")
    A("  v_sub_f32 v20, v20, v24")
    A("  v_mul_f32 v20, s60, v20")
    A("  v_exp_f32 v20, v20")
    A("  s_nop 0")
    A("  v_mul_f32 v20, v20, v22")
    for r in (1, 2, 4):
        A("  s_nop 1")
        A(f"  v_add_f32_dpp v20, v20, v20 row_ror:{r} row_mask:0xf bank_mask:0xf")
    A("  v_rcp_f32 v21, v20")
    A("  s_nop 0")
    A("  v_fma_f32 v22, -v20, v21, 1.0")
    A("  v_fma_f32 v26, v22, v21, v21")
    A("  v_mov_b32 v25, v24")
    A("  v_mov_b32 v24, 1")
    A("  v_mov_b32 v27, 0")
    A(f"  v_mov_b32 v5, {GOK}")
    A("  s_mov_b64 exec, 1")
    A("  ds_write_b128 v5, v[24:27]")
    A("  s_waitcnt vmcnt(0) lgkmcnt(0)")
    A("  s_mov_b64 exec, -1")
    stamp(0)
    A("L_end:")
    A("  s_endpgm")

    nv = 248 if stamps else 192
    A('.section .rodata,"a"')
    A(".p2align 6")
    A(f".amdhsa_kernel {NAME}_kernel")
    A(f"  .amdhsa_next_free_vgpr {nv}")
    A("  .amdhsa_next_free_sgpr 102")
    A(f"  .amdhsa_accum_offset {nv}")
    A("  .amdhsa_group_segment_fixed_size 0")
    A("  .amdhsa_kernarg_size 104")
    A("  .amdhsa_user_sgpr_count 2")
    A("  .amdhsa_user_sgpr_kernarg_segment_ptr 1")
    A("  .amdhsa_system_sgpr_workgroup_id_x 1")
    A("  .amdhsa_float_denorm_mode_32 3")
    A(".end_amdhsa_kernel")
    return "\n".join(L) + "\n"


if __name__ == "__main__":
    out = sys.argv[1] if len(sys.argv) > 1 else "cdna_kernels/" + NAME + ".s"
    kw = {}
    for a in sys.argv[2:]:
        k, v = a.split("=")
        kw[k] = v if k == "sched" else int(v)
    open(out, "w").write(gen(**kw))
```

```python
import sys

NAME = "parallel_sum__mha_block_cached__dense_activation_squared_relu__decode"
HEADER = open("cdna_kernels/" + NAME + ".s.ref").read().split("; Override launch geometry")[0]

RING = 0
NSLOT = 8
CTRL = 131072
LANDED = CTRL + 0
QCNT = CTRL + 8
MCNT = CTRL + 12
GOK = CTRL + 16
WSEL = CTRL + 4
GEN = CTRL + 32
FIN = CTRL + 64
WML = CTRL + 128
R1 = CTRL + 512
R2 = R1 + 8192
XN = R1
SC = R1
QPART = R2
PART = R1
HXN = R2 + 8192
QBUF = HXN + 2048
HPART = QBUF + 1024
HID = HPART + 2048
ZB = HID + 256
EL = ZB + 256
YP = EL + 256
LDS_TOTAL = YP + 1024

WS_E = 0x0
WS_RESET = 0x8000
WS_PG = 0x8000
WS_YZ = 0x10000
WS_PO = 0x50000
WS_SIZE = 0x90000
WS_DBG = 0x8000000

LOG2E = 0x3FB8AA3B
SCALE = 0x3DB504F3
EPS = 0x3727C5AC


def gen(W=20, stamps=0, sleep_c=2, hstart=12, sig0=44, qchk=56, hwin=4, psleep=1, fine=0, nboost=12, W2=40,
        wl="19,23,26", th="-4,3,6", cstep=2, msleep=2, ctl=1, womid=1, pmask=1):
    L = []
    A = L.append
    NT = 256

    A(HEADER.rstrip("\n"))
    A(f"; @launch grid=(256,1,1) block=(384,1,1) lds={LDS_TOTAL}")
    A('.amdgcn_target "amdgcn-amd-amdhsa--gfx950"')
    A(".text")
    A(f".globl {NAME}_kernel")
    A(".p2align 8")
    A(f".type {NAME}_kernel,@function")
    A(f"{NAME}_kernel:")
    A("  s_cmp_ge_u32 s2, 256")
    A("  s_cbranch_scc1 L_end")
    if stamps:
        A("  s_memrealtime s[90:91]")
    A("  s_load_dwordx16 s[16:31], s[0:1], 0")
    A("  s_load_dwordx8 s[32:39], s[0:1], 64")
    A("  s_load_dwordx2 s[40:41], s[0:1], 96")
    A("  v_lshrrev_b32 v1, 6, v0")
    A("  v_and_b32 v0, 63, v0")
    A("  v_lshlrev_b32 v2, 4, v0")
    A("  v_readfirstlane_b32 s3, v1")
    A("  s_and_b32 s4, s2, 7")
    A("  s_lshl_b32 s4, s4, 2")
    A("  s_lshr_b32 s5, s2, 3")
    A("  s_and_b32 s5, s5, 3")
    A("  s_add_u32 s4, s4, s5")
    A("  s_lshr_b32 s5, s2, 5")
    A("  s_lshl_b32 s7, s4, 3")
    A("  s_add_u32 s7, s7, s5")
    A("  s_mov_b32 s98, 0x200000")
    A("  s_cmp_lg_u32 s3, 0")
    A("  s_waitcnt lgkmcnt(0)")
    A("  s_cbranch_scc1 L_notloader")

    def budget():
        A("  s_sub_u32 s98, s98, 1")
        A("  s_cbranch_scc1 L_end")

    def srd(d, ptr, nbytes):
        A(f"  s_mov_b32 s{d}, s{ptr}")
        A(f"  s_mov_b32 s{d+1}, s{ptr+1}")
        A(f"  s_mov_b32 s{d+2}, {nbytes}")
        A(f"  s_mov_b32 s{d+3}, 0x20000")

    def ws_srd():
        srd(44, 40, 0x10000000 if stamps else WS_SIZE)

    def stamp(slot):
        if not stamps:
            return
        A("  s_memrealtime s[92:93]")
        A("  s_getreg_b32 s94, hwreg(HW_REG_XCC_ID)")
        A("  s_waitcnt lgkmcnt(0)")
        A("  v_mov_b32 v240, s90")
        A("  v_mov_b32 v241, s91")
        A("  v_mov_b32 v242, s92")
        A("  v_mov_b32 v243, s94")
        A("  s_mul_i32 s95, s2, 6")
        A("  s_add_u32 s95, s95, s3")
        A("  s_lshl_b32 s95, s95, 4")
        A(f"  s_add_u32 s95, s95, {WS_DBG + slot * 0x100000}")
        A("  v_mov_b32 v244, 0")
        A("  s_mov_b64 s[96:97], exec")
        A("  s_mov_b64 exec, 1")
        A("  buffer_store_dwordx4 v[240:243], v244, s[44:47], s95 offen")
        A("  s_mov_b64 exec, s[96:97]")

    def ts(k):
        if stamps:
            A(f"  s_memrealtime s[{20 + 2 * k}:{21 + 2 * k}]")

    A("  s_lshl_b32 s42, s7, 21")
    A("  s_lshr_b32 s43, s7, 11")
    A("  s_add_u32 s8, s18, s42")
    A("  s_addc_u32 s9, s19, s43")
    A("  s_mov_b32 s10, 0x200000")
    A("  s_mov_b32 s11, 0x20000")
    SJ, SSLOT, SMO, SPUB, ST, SG = 50, 51, 52, 54, 55, 56
    A(f"  s_mov_b32 s{SSLOT}, {RING}")
    A(f"  s_mov_b32 s{SMO}, 0")

    def ld_tile(w, srdn, hook=None):
        for i in range(16):
            if i % 4 == 0:
                A(f"  s_add_u32 m0, s{SSLOT}, {(i // 4) * 4096}")
                if w is None:
                    A("  s_nop 0")
            if w is not None:
                A(f"  s_waitcnt vmcnt({w - 1})")
            A(f"  buffer_load_dwordx4 v2, {srdn}, s{SMO} offen offset:{(i % 4) * 1024} nt lds")
            if i % 4 == 3:
                A(f"  s_add_u32 s{SMO}, s{SMO}, 4096")
            if hook:
                hook(i)

    def ld_advance():
        A(f"  s_add_u32 s{SJ}, s{SJ}, 1")
        A(f"  s_add_u32 s{SSLOT}, s{SSLOT}, 16384")
        A(f"  s_and_b32 s{SSLOT}, s{SSLOT}, {NSLOT * 16384 - 1}")

    def ld_gen_read(nxt):
        A(f"  s_add_u32 s{ST}, s{SJ}, {nxt}")
        A(f"  s_and_b32 s{ST}, s{ST}, {NSLOT - 1}")
        A(f"  s_lshl_b32 s{ST}, s{ST}, 2")
        A(f"  s_add_u32 s{ST}, s{ST}, {GEN}")
        A(f"  v_mov_b32 v5, s{ST}")
        A("  ds_read_b32 v6, v5")

    def publish():
        A(f"  v_mov_b32 v3, s{SPUB}")
        A("  ds_write_b32 v4, v3")

    ld_tile(None, "s[8:11]")
    A("  s_setprio 3")
    A("  s_add_u32 s12, s20, s42")
    A("  s_addc_u32 s13, s21, s43")
    A(f"  s_mov_b32 s{SJ}, 0")
    A(f"  s_mov_b32 s{SPUB}, 0")
    A(f"  v_mov_b32 v4, {LANDED}")
    ld_advance()
    if stamps:
        ws_srd()
    A("  s_barrier")
    if stamps:
        A("  v_mov_b32 v10, 0")
        A("  s_memrealtime s[92:93]")
    ld_gen_read(0)

    def prog_stamp():
        if stamps:
            if fine:
                A(f"  s_sub_u32 m0, s{SJ}, {fine}")
                A("  s_max_i32 m0, m0, 0")
            else:
                A(f"  s_lshr_b32 m0, s{SJ}, 2")
            A("  s_min_u32 m0, m0, 63")
            A("  s_nop 0")
            A("  v_writelane_b32 v10, s92, m0")

    levels = [W] + [int(x) for x in wl.split(",")]
    SW = 57

    def body(w):
        ipub = (15 + w) % 16
        lag = (15 + w) // 16 - 1

        def hook(i):
            if i == ipub:
                A(f"  s_sub_u32 s{ST}, s{SJ}, {lag}")
                A(f"  s_max_i32 s{SPUB}, s{SPUB}, s{ST}")
                publish()
            if i == 10:
                ld_gen_read(1)
                A("  ds_read_b32 v7, v4 offset:4")

        ld_tile(w, "s[8:11]", hook)
        A("  s_branch L_ld_adv")

    A("  v_mov_b32 v7, 0")
    A("L_ld_loop:")
    A("  s_waitcnt lgkmcnt(0)")
    prog_stamp()
    A(f"  v_readfirstlane_b32 s{SG}, v6")
    A(f"  v_readfirstlane_b32 s{SW}, v7")
    A(f"  s_lshr_b32 s{ST}, s{SJ}, 3")
    A(f"  s_cmp_ge_u32 s{SG}, s{ST}")
    A("  s_cbranch_scc0 L_ld_slow")
    A("L_ld_go:")
    A(f"  s_cmp_lg_u32 s{SW}, 0")
    A("  s_cbranch_scc1 L_ld_sel")
    A(f"  s_cmp_ge_u32 s{SJ}, {NT - nboost}")
    A("  s_cbranch_scc1 L_ld_wB")
    body(levels[0])
    A("L_ld_sel:")
    A(f"  s_cmp_ge_u32 s{SJ}, {NT - nboost}")
    A("  s_cbranch_scc1 L_ld_wB")
    A(f"  s_cmp_eq_u32 s{SW}, 2")
    A("  s_cbranch_scc1 L_ld_w2")
    A(f"  s_cmp_eq_u32 s{SW}, 3")
    A("  s_cbranch_scc1 L_ld_w3")
    body(levels[1])
    A("L_ld_w2:")
    body(levels[2])
    A("L_ld_w3:")
    body(levels[3])
    A("L_ld_slow:")
    A("  s_waitcnt vmcnt(0)")
    A(f"  s_max_u32 s{SPUB}, s{SPUB}, s{SJ}")
    publish()
    A("L_ld_slow2:")
    budget()
    A("  s_sleep 1")
    A("  ds_read_b32 v6, v5")
    A("  s_waitcnt lgkmcnt(0)")
    A(f"  v_readfirstlane_b32 s{SG}, v6")
    A(f"  s_lshr_b32 s{ST}, s{SJ}, 3")
    A(f"  s_cmp_ge_u32 s{SG}, s{ST}")
    A("  s_cbranch_scc0 L_ld_slow2")
    A("  s_branch L_ld_go")
    A("L_ld_wB:")
    body(W2)
    A("L_ld_sw:")
    A("  s_mov_b32 s8, s12")
    A("  s_mov_b32 s9, s13")
    A(f"  s_mov_b32 s{SMO}, 0")
    A("  s_branch L_ld_loop")
    A("L_ld_adv:")
    ld_advance()
    if stamps:
        A("  s_memrealtime s[92:93]")
    A(f"  s_and_b32 s{ST}, s{SJ}, 127")
    A("  s_cbranch_scc1 L_ld_loop")
    A(f"  s_cmp_lt_u32 s{SJ}, {NT}")
    A("  s_cbranch_scc1 L_ld_sw")
    nrem = (max(levels + [W2]) + 15) // 16 + 1
    for k in range(nrem - 1, -1, -1):
        A(f"  s_waitcnt vmcnt({min(63, 16 * k)})")
        A(f"  s_max_u32 s{SPUB}, s{SPUB}, {NT - k}")
        publish()
    A("  s_waitcnt lgkmcnt(0)")
    if stamps:
        A("  s_lshl_b32 s95, s2, 8")
        A(f"  s_add_u32 s95, s95, {WS_DBG + 3 * 0x100000}")
        A("  v_lshlrev_b32 v11, 2, v0")
        A("  buffer_store_dword v10, v11, s[44:47], s95 offen")
    stamp(0)
    A("  s_endpgm")

    def wave_allsum(v, t, s0, rors=(1, 2, 4, 8)):
        for r in rors:
            A("  s_nop 1")
            A(f"  v_add_f32_dpp v{v}, v{v}, v{v} row_ror:{r} row_mask:0xf bank_mask:0xf")
        A("  s_nop 0")
        for k in range(4):
            A(f"  v_readlane_b32 s{s0 + k}, v{v}, {16 * k}")
        A("  s_nop 1")
        A(f"  v_mov_b32 v{v}, s{s0}")
        A(f"  v_mov_b32 v{t}, s{s0 + 2}")
        A(f"  v_add_f32 v{v}, s{s0 + 1}, v{v}")
        A(f"  v_add_f32 v{t}, s{s0 + 3}, v{t}")
        A(f"  v_add_f32 v{v}, v{v}, v{t}")

    def rnd1(v):
        A(f"  v_cvt_pk_bf16_f32 v{v}, 0, v{v}")

    def layernorm(xr, xnbase_sgpr):
        X = 8
        for k in range(4):
            A(f"  v_lshlrev_b32 v{X + 2 * k}, 16, v{xr + k}")
            A(f"  v_and_b32 v{X + 2 * k + 1}, 0xffff0000, v{xr + k}")
        A(f"  v_add_f32 v16, v{X}, v{X+1}")
        A(f"  v_add_f32 v17, v{X+2}, v{X+3}")
        A(f"  v_add_f32 v18, v{X+4}, v{X+5}")
        A(f"  v_add_f32 v19, v{X+6}, v{X+7}")
        A("  v_add_f32 v16, v16, v17")
        A("  v_add_f32 v18, v18, v19")
        A("  v_add_f32 v16, v16, v18")
        wave_allsum(16, 17, 60)
        A("  v_mul_f32 v16, 0x3b000000, v16")
        A("  v_mov_b32 v18, 0")
        for k in range(8):
            A(f"  v_sub_f32 v19, v{X + k}, v16")
            A("  v_fmac_f32 v18, v19, v19")
        wave_allsum(18, 17, 60)
        A("  v_mul_f32 v18, 0x3b000000, v18")
        rnd1(16)
        rnd1(18)
        A(f"  v_add_f32 v18, {hex(EPS)}, v18")
        rnd1(18)
        A("  v_sqrt_f32 v18, v18")
        A("  s_nop 0")
        rnd1(18)
        A("  v_rcp_f32 v19, v18")
        for k in range(8):
            A(f"  v_sub_f32 v{X + k}, v{X + k}, v16")
        for k in range(8):
            rnd1(X + k)
        for k in range(8):
            A(f"  v_mul_f32 v{20 + k}, v{X + k}, v19")
        for k in range(8):
            A(f"  v_fma_f32 v{X + k}, -v{20 + k}, v18, v{X + k}")
        for k in range(8):
            A(f"  v_fma_f32 v{20 + k}, v{X + k}, v19, v{20 + k}")
        for k in range(8):
            rnd1(20 + k)
        A("  v_lshlrev_b32 v16, 5, v0")
        A(f"  v_add_u32 v16, s{xnbase_sgpr}, v16")
        A("  ds_write_b128 v16, v[20:23]")
        A("  ds_write_b128 v16, v[24:27] offset:16")

    def gemv_acc(acc, wreg, lo, hi):
        for k in range(4):
            A(f"  v_dot2c_f32_bf16 v{acc + 2 * k}, v{lo}, v{wreg + k}")
            A(f"  v_dot2c_f32_bf16 v{acc + 2 * k + 1}, v{hi}, v{wreg + k}")

    def wait_lds_ge(tag, addr, thr, slp=8):
        A(f"  v_mov_b32 v191, {addr}")
        A(f"L_wl_{tag}:")
        budget()
        A(f"  s_sleep {slp}")
        A("  ds_read_b32 v1, v191")
        A("  s_waitcnt lgkmcnt(0)")
        A("  v_readfirstlane_b32 s75, v1")
        A(f"  s_cmp_ge_u32 s75, {thr}")
        A(f"  s_cbranch_scc0 L_wl_{tag}")

    def slot_offsets():
        A("  s_lshl_b32 s82, s7, 10")
        A(f"  s_add_u32 s80, s82, {WS_PO}")
        A(f"  s_add_u32 s82, s82, {WS_YZ}")

    A("L_notloader:")
    A("  s_cmp_eq_u32 s3, 5")
    A("  s_cbranch_scc1 L_helper")

    srd(8, 16, 1024)
    srd(12, 22, 512 * 4096 * 2)
    A("  buffer_load_dwordx4 v[28:31], v2, s[8:11], 0 offen nt")
    A("  s_sub_u32 s6, s3, 1")
    A("  v_lshrrev_b32 v4, 4, v0")
    A("  v_and_b32 v5, 15, v0")
    A("  v_lshlrev_b32 v6, 13, v4")
    A("  v_lshl_add_u32 v6, v5, 4, v6")
    A("  s_lshl_b32 s56, s6, 20")
    A("  s_lshl_b32 s57, s4, 8")
    A("  s_add_u32 s56, s56, s57")
    for i in range(32):
        A(f"  buffer_load_dwordx4 v[{32 + 4 * i}:{35 + 4 * i}], v6, s[12:15], s56 offen nt")
        A("  s_add_u32 s56, s56, 32768")
    A("  s_barrier")
    ws_srd()
    srd(48, 24, 4096 * 512 * 2)
    srd(52, 36, 1024)
    A("  s_lshl_b32 s74, s6, 11")
    A(f"  s_add_u32 s74, s74, {XN}")
    A("  s_waitcnt vmcnt(32)")
    layernorm(28, 74)
    A("  s_lshl_b32 s57, s6, 9")
    A("  s_add_u32 s57, s57, s74")
    A("  v_lshlrev_b32 v3, 2, v4")
    A("  v_add_u32 v3, s57, v3")
    for k in range(8):
        A(f"  v_mov_b32 v{8 + k}, 0")
    A("  s_waitcnt lgkmcnt(0)")
    for blk in range(4):
        for i in range(8):
            A(f"  ds_read_b32 v{16 + i}, v3 offset:{(blk * 8 + i) * 16}")
        for i in range(8):
            ii = blk * 8 + i
            A(f"  s_waitcnt vmcnt({31 - ii}) lgkmcnt({7 - i})")
            A(f"  v_lshrrev_b32 v24, 16, v{16 + i}")
            gemv_acc(8, 32 + 4 * ii, 24, 16 + i)
    A("  s_lshl_b32 s57, s6, 11")
    A(f"  s_add_u32 s57, s57, {PART}")
    A("  v_lshlrev_b32 v176, 5, v0")
    A("  v_add_u32 v176, s57, v176")
    A("  s_nop 0")
    A(f"  ds_write_b128 v176, v[8:11] offset:{QPART - PART}")
    A(f"  ds_write_b128 v176, v[12:15] offset:{QPART - PART + 16}")
    A(f"  v_mov_b32 v16, {QCNT}")
    A("  v_mov_b32 v17, 1")
    A("  s_waitcnt lgkmcnt(0)")
    A("  s_mov_b64 exec, 1")
    A("  ds_add_u32 v16, v17")
    A("  s_mov_b64 exec, -1")
    A("  v_lshlrev_b32 v177, 3, v0")
    A(f"  v_add_u32 v177, {PART}, v177")
    A("L_c_qwait:")
    budget()
    A("  ds_read_b32 v17, v16")
    A("  s_waitcnt lgkmcnt(0)")
    A("  v_readfirstlane_b32 s57, v17")
    A("  s_cmp_ge_u32 s57, 4")
    A("  s_cbranch_scc0 L_c_qwait")
    for p in range(16):
        A(f"  ds_read_b64 v[{32 + 2 * p}:{33 + 2 * p}], v177 offset:{QPART - PART + p * 512}")
    A("  s_waitcnt lgkmcnt(0)")
    for step in (8, 4, 2, 1):
        for p in range(step):
            A(f"  v_add_f32 v{32 + 2 * p}, v{32 + 2 * p}, v{32 + 2 * (p + step)}")
            A(f"  v_add_f32 v{33 + 2 * p}, v{33 + 2 * p}, v{33 + 2 * (p + step)}")
    A("  v_cvt_pk_bf16_f32 v32, v32, v33")
    A("  s_lshl_b32 s57, s6, 8")
    A(f"  s_add_u32 s57, s57, {QBUF}")
    A("  v_lshlrev_b32 v16, 2, v0")
    A("  v_add_u32 v16, s57, v16")
    A("  ds_write_b32 v16, v32")
    A("  v_lshlrev_b32 v16, 4, v5")
    A("  v_add_u32 v16, s57, v16")
    A("  s_waitcnt lgkmcnt(0)")
    A("  ds_read_b128 v[4:7], v16")
    slot_offsets()
    ACC, VL, VM = 8, 16, 17
    D = 32
    S = 96
    for k in range(8):
        A(f"  v_mov_b32 v{ACC + k}, 0")
    A(f"  v_mov_b32 v{VL}, 0")
    A(f"  v_mov_b32 v{VM}, 0xff800000")
    A(f"  v_mov_b32 v19, {LANDED}")
    A("  v_lshrrev_b32 v18, 2, v0")
    A("  v_lshlrev_b32 v18, 3, v18")
    A("  s_lshl_b32 s57, s6, 7")
    A(f"  s_add_u32 s57, s57, {SC}")
    A("  v_add_u32 v18, s57, v18")
    A(f"  s_mov_b32 s60, {hex(LOG2E)}")
    A(f"  s_mov_b32 s61, {hex(SCALE)}")
    A("  s_mov_b32 s62, 0xffff0000")
    STI = 63
    A(f"  s_mov_b32 s{STI}, s6")
    A("  s_waitcnt lgkmcnt(0)")
    stamp(1)

    def tile_fetch(tag, extra=None):
        A(f"L_c_loop{tag}:")
        A("  ds_read_b32 v30, v19")
        A(f"  s_and_b32 s64, s{STI}, {NSLOT - 1}")
        A("  s_lshl_b32 s65, s64, 14")
        A("  v_add_u32 v29, s65, v2")
        A("  s_waitcnt lgkmcnt(0)")
        A("  v_readfirstlane_b32 s57, v30")
        A(f"  s_cmp_gt_u32 s57, s{STI}")
        A(f"  s_cbranch_scc1 L_c_go{tag}")
        budget()
        A(f"  s_sleep {sleep_c}")
        A(f"  s_branch L_c_loop{tag}")
        A(f"L_c_go{tag}:")
        if extra:
            extra()
        for i in range(14):
            A(f"  ds_read_b128 v[{D + 4 * i}:{D + 4 * i + 3}], v29 offset:{i * 1024}")
        A("  s_lshl_b32 s64, s64, 2")
        A(f"  s_add_u32 s64, s64, {GEN}")
        A(f"  s_lshr_b32 s65, s{STI}, 3")
        A("  s_add_u32 s65, s65, 1")
        A("  v_mov_b32 v30, s64")
        A("  v_mov_b32 v31, s65")

    def qk_half(h):
        s = S + 8 * h
        d = D + 32 * h
        for i in range(8):
            A(f"  v_dot2_f32_bf16 v{s + i}, v{d + 4 * i}, v4, 0")
        for k in range(1, 4):
            for i in range(8):
                A(f"  v_dot2_f32_bf16 v{s + i}, v{d + 4 * i + k}, v{4 + k}, v{s + i}")

    tile_fetch("K")
    A("  s_waitcnt lgkmcnt(6)")
    for i in (14, 15):
        A(f"  ds_read_b128 v[{D + 4 * i}:{D + 4 * i + 3}], v29 offset:{i * 1024}")
    qk_half(0)
    A("  s_waitcnt lgkmcnt(0)")
    A("  ds_write_b32 v30, v31")
    qk_half(1)
    A("  s_nop 0")
    for j in range(8):
        A(f"  v_add_f32_dpp v{S + 2 * j}, v{S + 2 * j}, v{S + 2 * j} row_ror:8 row_mask:0xf bank_mask:0x3")
    for j in range(8):
        A(f"  v_add_f32_dpp v{S + 2 * j}, v{S + 2 * j + 1}, v{S + 2 * j + 1} row_ror:8 row_mask:0xf bank_mask:0xc")
    U = [S, S + 4, S + 8, S + 12]
    for u in U:
        A(f"  v_add_f32_dpp v{u}, v{u}, v{u} row_half_mirror row_mask:0xf bank_mask:0x5")
    for u in U:
        A(f"  v_add_f32_dpp v{u}, v{u + 2}, v{u + 2} row_half_mirror row_mask:0xf bank_mask:0xa")
    for u in U:
        A(f"  v_add_f32_dpp v{u}, v{u}, v{u} quad_perm:[1,0,3,2] row_mask:0xf bank_mask:0xf")
    for u in U:
        A(f"  v_add_f32_dpp v{u}, v{u}, v{u} quad_perm:[2,3,0,1] row_mask:0xf bank_mask:0xf")
    for u in U:
        A(f"  v_cvt_pk_bf16_f32 v{u}, 0, v{u}")
    for u in U:
        A(f"  v_mul_f32 v{u}, s61, v{u}")
    A(f"  v_cvt_pk_bf16_f32 v20, v{U[0]}, v{U[1]}")
    A(f"  v_cvt_pk_bf16_f32 v21, v{U[2]}, v{U[3]}")
    A("  ds_write_b64 v18, v[20:21]")
    A("  v_lshlrev_b32 v22, 16, v20")
    A("  v_and_b32 v23, s62, v20")
    A("  v_lshlrev_b32 v24, 16, v21")
    A("  v_and_b32 v25, s62, v21")
    A("  v_add_u32 v18, 512, v18")
    A("  v_max_f32 v26, v22, v23")
    A("  v_max3_f32 v26, v24, v25, v26")
    A(f"  v_cmp_gt_f32 vcc, v26, v{VM}")
    A("  s_cbranch_vccnz L_c_newmax")
    A("L_c_cont:")
    for r in (22, 23, 24, 25):
        A(f"  v_sub_f32 v{r}, v{r}, v{VM}")
    for r in (22, 23, 24, 25):
        A(f"  v_mul_f32 v{r}, s60, v{r}")
    for r in (22, 23, 24, 25):
        A(f"  v_exp_f32 v{r}, v{r}")
    A(f"  s_add_u32 s{STI}, s{STI}, 4")
    A("  v_add_f32 v22, v22, v23")
    A("  v_add_f32 v24, v24, v25")
    A(f"  s_cmp_lt_u32 s{STI}, {NT // 2}")
    A("  v_add_f32 v22, v22, v24")
    A(f"  v_add_f32 v{VL}, v{VL}, v22")
    A("  s_cbranch_scc1 L_c_loopK")
    A("  s_branch L_c_mid")
    A("L_c_newmax:")
    A("  s_nop 0")
    A("  v_max_f32_dpp v26, v26, v26 row_ror:4 row_mask:0xf bank_mask:0xf")
    A("  s_nop 1")
    A("  v_max_f32_dpp v26, v26, v26 row_ror:8 row_mask:0xf bank_mask:0xf")
    A("  s_nop 0")
    for k in range(4):
        A(f"  v_readlane_b32 s{64 + k}, v26, {16 * k}")
    A(f"  v_mov_b32 v27, v{VM}")
    A("  s_nop 0")
    for k in range(4):
        A(f"  v_max_f32 v{VM}, s{64 + k}, v{VM}")
    A(f"  v_sub_f32 v27, v27, v{VM}")
    A("  v_mul_f32 v27, s60, v27")
    A("  v_exp_f32 v27, v27")
    A("  s_nop 0")
    A(f"  v_mul_f32 v{VL}, v{VL}, v27")
    A("  s_branch L_c_cont")

    def wo_loads():
        A("  v_and_b32 v28, 7, v0")
        A("  v_lshlrev_b32 v29, 12, v28")
        A("  v_lshrrev_b32 v27, 3, v0")
        A("  v_lshl_add_u32 v29, v27, 4, v29")
        A("  s_lshl_b32 s56, s4, 17")
        A("  s_lshl_b32 s57, s6, 15")
        A("  s_add_u32 s56, s56, s57")
        A("  s_lshl_b32 s57, s5, 7")
        A("  s_add_u32 s56, s56, s57")
        for i in range(4):
            A(f"  buffer_load_dwordx4 v[{160 + 4 * i}:{163 + 4 * i}], v29, s[48:51], s56 offen offset:{i * 1024} nt")

    A("L_c_mid:")
    wave_allsum(VL, 20, 64, rors=(4, 8))
    A("  s_lshl_b32 s57, s6, 3")
    A(f"  s_add_u32 s57, s57, {WML}")
    A("  v_mov_b32 v22, s57")
    A(f"  v_mov_b32 v20, v{VM}")
    A(f"  v_mov_b32 v21, v{VL}")
    A("  ds_write_b64 v22, v[20:21]")
    A(f"  v_mov_b32 v22, {MCNT}")
    A("  v_mov_b32 v23, 1")
    A(f"  v_subrev_u32 v18, {32 * 512}, v18")
    A("  s_waitcnt lgkmcnt(0)")
    A("  s_mov_b64 exec, 1")
    A("  ds_add_u32 v22, v23")
    A("  s_mov_b64 exec, -1")
    A(f"  v_mov_b32 v22, {GOK}")
    A("L_c_gwait:")
    budget()
    A("  s_sleep 1")
    A("  ds_read_b128 v[24:27], v22")
    A("  s_waitcnt lgkmcnt(0)")
    A("  v_readfirstlane_b32 s57, v24")
    A("  s_cmp_eq_u32 s57, 1")
    A("  s_cbranch_scc0 L_c_gwait")
    A(f"  v_mov_b32 v{VM}, v25")
    A(f"  v_mov_b32 v{VL}, v26")
    if womid:
        wo_loads()
    ts(7)

    tile_fetch("V", extra=lambda: A("  ds_read_b64 v[20:21], v18"))
    A("  s_waitcnt lgkmcnt(13)")
    for i in (14, 15):
        A(f"  ds_read_b128 v[{D + 4 * i}:{D + 4 * i + 3}], v29 offset:{i * 1024}")
    A("  v_lshlrev_b32 v22, 16, v20")
    A("  v_and_b32 v23, s62, v20")
    A("  v_lshlrev_b32 v24, 16, v21")
    A("  v_and_b32 v25, s62, v21")
    A("  v_add_u32 v18, 512, v18")
    for r in (22, 23, 24, 25):
        A(f"  v_sub_f32 v{r}, v{r}, v{VM}")
    for r in (22, 23, 24, 25):
        A(f"  v_mul_f32 v{r}, s60, v{r}")
    for r in (22, 23, 24, 25):
        A(f"  v_exp_f32 v{r}, v{r}")
    A("  s_nop 0")
    for r in (22, 23, 24, 25):
        A(f"  v_mul_f32 v{r}, v{r}, v{VL}")
    for k, r in enumerate((22, 23, 24, 25)):
        A(f"  v_cvt_pk_bf16_f32 v{S + 2 * k}, v{r}, 0")
        A(f"  v_cvt_pk_bf16_f32 v{S + 2 * k + 1}, 0, v{r}")
    bank_of = {0: 0, 2: 1, 1: 2, 3: 3}
    for i in range(16):
        if i == 0:
            A("  s_waitcnt lgkmcnt(8)")
        if i == 8:
            A("  s_waitcnt lgkmcnt(0)")
            A("  ds_write_b32 v30, v31")
        pl, ph = S + 2 * (i // 4), S + 2 * (i // 4) + 1
        b = bank_of[i % 4]
        for k in range(4):
            A(f"  v_dot2c_f32_bf16_dpp v{ACC + 2 * k}, v{pl}, v{D + 4 * i + k} row_newbcast:{4 * b} row_mask:0xf bank_mask:0xf")
            A(f"  v_dot2c_f32_bf16_dpp v{ACC + 2 * k + 1}, v{ph}, v{D + 4 * i + k} row_newbcast:{4 * b} row_mask:0xf bank_mask:0xf")
    A(f"  s_add_u32 s{STI}, s{STI}, 4")
    A(f"  s_cmp_lt_u32 s{STI}, {NT}")
    A("  s_cbranch_scc1 L_c_loopV")

    stamp(2)
    A("  v_and_b32 v28, 7, v0")
    A("  v_lshlrev_b32 v29, 12, v28")
    A("  v_lshrrev_b32 v27, 3, v0")
    A("  v_lshl_add_u32 v29, v27, 4, v29")
    A(f"  ds_write_b128 v176, v[{ACC}:{ACC + 3}]")
    A(f"  ds_write_b128 v176, v[{ACC + 4}:{ACC + 7}] offset:16")
    if not womid:
        wo_loads()
    A("  v_lshlrev_b32 v20, 2, v27")
    A(f"  v_add_u32 v20, {EL}, v20")
    A("  ds_read_b32 v178, v20")
    A(f"  v_mov_b32 v20, {FIN}")
    A("  ds_read_b32 v182, v20 offset:16")
    A("  ds_read_b128 v[184:187], v20")
    A("  v_and_b32 v22, 31, v0")
    A("  v_lshlrev_b32 v22, 2, v22")
    A(f"  v_add_u32 v22, {EL + 64}, v22")
    A("  ds_read_b32 v183, v22")
    A("  v_lshlrev_b32 v21, 10, v27")
    A("  v_lshl_add_u32 v21, v28, 5, v21")
    A("  s_lshl_b32 s56, s4, 13")
    A("  s_lshl_b32 s57, s6, 8")
    A("  s_add_u32 s56, s56, s57")
    A(f"  s_add_u32 s56, s56, {WS_PO}")
    A("  s_waitcnt lgkmcnt(0)")
    A("  s_barrier")
    ts(0)
    A("  s_cmp_lg_u32 s6, 0")
    A("  s_cbranch_scc1 L_e_poll1")
    for p in range(16):
        A(f"  ds_read_b64 v[{32 + 2 * p}:{33 + 2 * p}], v177 offset:{p * 512}")
    A("  v_mov_b32 v65, v182")
    A("  v_mov_b32 v67, v182")
    A("  s_waitcnt lgkmcnt(0)")
    for step in (8, 4, 2):
        for p in range(step):
            A(f"  v_add_f32 v{32 + 2 * p}, v{32 + 2 * p}, v{32 + 2 * (p + step)}")
            A(f"  v_add_f32 v{33 + 2 * p}, v{33 + 2 * p}, v{33 + 2 * (p + step)}")
    A("  v_add_f32 v64, v32, v34")
    A("  v_add_f32 v66, v33, v35")
    A("  buffer_store_dwordx4 v[64:67], v2, s[44:47], s80 offen sc0 sc1")
    ts(1)
    A("L_e_poll1:")
    A("  buffer_load_dwordx4 v[32:35], v21, s[44:47], s56 offen sc0 sc1")
    A("  buffer_load_dwordx4 v[36:39], v21, s[44:47], s56 offen offset:16 sc0 sc1")
    A("  s_waitcnt vmcnt(0)")
    A("  v_xor_b32 v22, v33, v178")
    A("  v_xor_b32 v23, v35, v178")
    A("  v_xor_b32 v24, v37, v178")
    A("  v_xor_b32 v25, v39, v178")
    A("  v_or_b32 v22, v22, v23")
    A("  v_or3_b32 v22, v24, v25, v22")
    A("  v_cmp_ne_u32 vcc, 0, v22")
    A("  s_cbranch_vccz L_e_got1")
    if pmask:
        A("  s_mov_b64 exec, vcc")
    budget()
    if psleep:
        A(f"  s_sleep {psleep}")
    A("  s_branch L_e_poll1")
    A("L_e_got1:")
    A("  s_mov_b64 exec, -1")
    ts(2)
    O = (32, 34, 36, 38)
    for o in O:
        A(f"  v_add_f32_dpp v{o}, v{o}, v{o} row_ror:8 row_mask:0xf bank_mask:0xf")
    for o in O:
        A(f"  v_mov_b32 v{o + 1}, v{o}")
    A("  s_nop 0")
    for o in O:
        A(f"  v_permlane16_swap_b32 v{o}, v{o + 1}")
    for o in O:
        A(f"  v_add_f32 v{o}, v{o}, v{o + 1}")
    for o in O:
        A(f"  v_mov_b32 v{o + 1}, v{o}")
    A("  s_nop 0")
    for o in O:
        A(f"  v_permlane32_swap_b32 v{o}, v{o + 1}")
    for o in O:
        A(f"  v_add_f32 v{o}, v{o}, v{o + 1}")
    for k in range(8):
        A(f"  v_mov_b32 v{8 + k}, 0")
    for i, o in enumerate(O):
        A(f"  v_cvt_pk_bf16_f32 v{40 + i}, v{o}, 0")
        A(f"  v_cvt_pk_bf16_f32 v{44 + i}, 0, v{o}")
    for i in range(4):
        gemv_acc(8, 160 + 4 * i, 40 + i, 44 + i)
    A("  v_lshlrev_b32 v20, 5, v27")
    A("  s_lshl_b32 s57, s6, 8")
    A(f"  s_add_u32 s57, s57, {YP}")
    A("  v_add_u32 v20, s57, v20")
    for k in range(8):
        A(f"  v_add_f32_dpp v{8 + k}, v{8 + k}, v{8 + k} quad_perm:[1,0,3,2] row_mask:0xf bank_mask:0xf")
    for k in range(8):
        A(f"  v_add_f32_dpp v{8 + k}, v{8 + k}, v{8 + k} quad_perm:[2,3,0,1] row_mask:0xf bank_mask:0xf")
    for k in range(8):
        A(f"  v_add_f32_dpp v{8 + k}, v{8 + k}, v{8 + k} row_half_mirror row_mask:0xf bank_mask:0xf")
    A("  s_mov_b32 s58, 0x01010101")
    A("  s_mov_b32 s59, 0x01010101")
    A("  s_mov_b64 exec, s[58:59]")
    A("  ds_write_b128 v20, v[8:11]")
    A("  ds_write_b128 v20, v[12:15] offset:16")
    A("  s_mov_b64 exec, -1")
    A("  v_lshlrev_b32 v20, 2, v0")
    A(f"  v_add_u32 v21, {YP}, v20")
    A("  s_waitcnt lgkmcnt(0)")
    ts(3)
    A("  s_barrier")
    ts(4)
    A("  s_cmp_lg_u32 s6, 0")
    A("  s_cbranch_scc1 L_end")
    for p in range(4):
        A(f"  ds_read_b32 v{32 + p}, v21 offset:{p * 256}")
    A(f"  v_add_u32 v22, {ZB}, v20")
    A("  ds_read_b32 v66, v22")
    A("  v_and_b32 v22, 31, v0")
    A("  v_lshlrev_b32 v22, 13, v22")
    A("  v_lshrrev_b32 v23, 5, v0")
    A("  v_lshl_add_u32 v22, v23, 4, v22")
    A("  s_lshl_b32 s56, s5, 10")
    A("  s_lshl_b32 s57, s4, 5")
    A("  s_add_u32 s56, s56, s57")
    A(f"  s_add_u32 s56, s56, {WS_YZ}")
    A("  s_waitcnt lgkmcnt(0)")
    A("  v_add_f32 v32, v32, v33")
    A("  v_add_f32 v34, v34, v35")
    A("  v_add_f32 v64, v32, v34")
    A("  buffer_store_dwordx4 v[64:67], v2, s[44:47], s82 offen sc0 sc1")
    ts(5)
    A("L_e_poll2:")
    A("  buffer_load_dwordx4 v[8:11], v22, s[44:47], s56 offen sc0 sc1")
    A("  s_waitcnt vmcnt(0)")
    A("  v_xor_b32 v12, v9, v183")
    A("  v_xor_b32 v13, v11, v183")
    A("  v_or_b32 v12, v12, v13")
    A("  v_cmp_ne_u32 vcc, 0, v12")
    A("  s_cbranch_vccz L_e_got2")
    if pmask:
        A("  s_mov_b64 exec, vcc")
    budget()
    if psleep:
        A(f"  s_sleep {psleep}")
    A("  s_branch L_e_poll2")
    A("L_e_got2:")
    A("  s_mov_b64 exec, -1")
    ts(6)
    for r in (1, 2, 4, 8):
        A(f"  v_add_f32_dpp v8, v8, v8 row_ror:{r} row_mask:0xf bank_mask:0xf")
        A(f"  v_add_f32_dpp v10, v10, v10 row_ror:{r} row_mask:0xf bank_mask:0xf")
        A("  s_nop 0")
    for k in range(4):
        A(f"  v_readlane_b32 s{60 + k}, v8, {16 * k}")
    for k in range(4):
        A(f"  v_readlane_b32 s{64 + k}, v10, {16 * k}")
    A("  s_nop 0")
    A("  v_mov_b32 v8, s60")
    A("  v_mov_b32 v9, s62")
    A("  v_mov_b32 v10, s64")
    A("  v_mov_b32 v11, s66")
    A("  v_add_f32 v8, s61, v8")
    A("  v_add_f32 v9, s63, v9")
    A("  v_add_f32 v10, s65, v10")
    A("  v_add_f32 v11, s67, v11")
    for r in (8, 9, 10, 11):
        rnd1(r)
    for k in range(4):
        A(f"  v_add_f32 v{8 + k}, v{184 + k}, v{8 + k}")
    for r in (8, 9, 10, 11):
        rnd1(r)
    A("  v_add_f32 v8, v8, v10")
    A("  v_add_f32 v9, v9, v11")
    A("  v_cvt_pk_bf16_f32 v8, v8, v9")
    A("  s_lshl_b32 s56, s5, 7")
    A("  s_lshl_b32 s57, s4, 2")
    A("  s_add_u32 s56, s56, s57")
    A("  v_mov_b32 v9, 0")
    A("  s_mov_b64 exec, 1")
    A("  buffer_store_dword v8, v9, s[52:55], s56 offen")
    if stamps:
        A("  s_waitcnt lgkmcnt(0)")
        for k in range(8):
            A(f"  v_mov_b32 v{200 + k}, s{20 + 2 * k}")
        A("  s_lshl_b32 s95, s2, 5")
        A(f"  s_add_u32 s95, s95, {WS_DBG + 4 * 0x100000}")
        A("  buffer_store_dwordx4 v[200:203], v9, s[44:47], s95 offen")
        A("  buffer_store_dwordx4 v[204:207], v9, s[44:47], s95 offen offset:16")
    A("  s_mov_b64 exec, -1")
    stamp(0)
    A("  s_endpgm")

    A("L_helper:")
    A("  v_lshlrev_b32 v3, 2, v0")
    A(f"  v_add_u32 v4, {CTRL}, v3")
    A("  v_mov_b32 v5, 0")
    A("  ds_write_b32 v4, v5")
    A("  s_waitcnt lgkmcnt(0)")
    A("  s_barrier")
    for k in range(4):
        A(f"  v_mov_b32 v{8 + k}, -1")
    ws_srd()
    srd(8, 16, 1024)
    srd(12, 28, 512 * 1792 * 2)
    srd(48, 32, 1792 * 512 * 2)
    srd(52, 30, 1792 * 2)
    srd(64, 34, 1024)
    srd(68, 38, 256)
    slot_offsets()
    wait_lds_ge("h0", LANDED, hstart)
    A("  s_cmp_lg_u32 s2, 0")
    A("  s_cbranch_scc1 L_h_noclear")
    A("  s_mov_b32 s57, 0")
    for i in range(WS_RESET // 4096):
        for k in range(4):
            A(f"  buffer_store_dwordx4 v[8:11], v2, s[44:47], s57 offen offset:{k * 1024} sc0 sc1")
        A("  s_add_u32 s57, s57, 4096")
    A("  s_waitcnt vmcnt(0)")
    A("  v_mov_b32 v5, 0")
    A("  v_mov_b32 v6, 1")
    A("  s_mov_b64 exec, 1")
    A("  buffer_store_dword v6, v5, s[68:71], 0 offen sc0 sc1")
    A("  s_mov_b64 exec, -1")
    A("L_h_noclear:")
    A("  v_mov_b32 v5, 0")
    A("  buffer_load_dwordx4 v[96:99], v2, s[44:47], s80 offen sc0 sc1 nt")
    A("  buffer_load_dwordx4 v[100:103], v2, s[44:47], s82 offen sc0 sc1 nt")
    A("  s_and_b32 s88, s2, 7")
    A("  s_lshl_b32 s88, s88, 8")
    A(f"  s_add_u32 s88, s88, {WS_PG}")
    A("  s_lshr_b32 s89, s2, 3")
    A("  s_lshl_b32 s89, s89, 3")
    A("  s_add_u32 s89, s89, s88")
    A("  buffer_load_dwordx2 v[104:105], v5, s[44:47], s89 offen sc0 sc1 nt")
    A("  buffer_load_dwordx4 v[28:31], v2, s[8:11], 0 offen nt")
    A("  v_lshlrev_b32 v7, 1, v0")
    A("  s_mul_i32 s72, s4, 112")
    A("  buffer_load_ushort v188, v7, s[52:55], s72 offen nt")
    A("  s_lshl_b32 s72, s5, 7")
    A("  s_lshl_b32 s73, s4, 2")
    A("  s_add_u32 s72, s72, s73")
    A("  buffer_load_dword v189, v5, s[8:11], s72 offen nt")
    A("  buffer_load_dword v190, v5, s[64:67], s72 offen nt")
    A("  v_lshrrev_b32 v4, 3, v0")
    A("  v_and_b32 v5, 7, v0")
    A("  v_mul_u32_u24 v6, 3584, v4")
    A("  v_lshlrev_b32 v7, 4, v5")
    A("  v_add_u32 v6, v6, v7")
    A("  v_lshlrev_b32 v7, 10, v4")
    A("  v_lshl_add_u32 v7, v5, 4, v7")
    A("  s_mul_i32 s59, s4, 112")
    A("  s_mul_i32 s76, s4, 57344")
    A("  s_lshl_b32 s73, s5, 7")
    A("  s_add_u32 s76, s76, s73")
    A(f"  s_mov_b32 s74, {HXN}")
    A("  s_waitcnt vmcnt(0)")
    A("  v_readfirstlane_b32 s84, v97")
    A("L_h_ep:")
    A("  s_add_u32 s84, s84, 1")
    A("  s_cmp_eq_u32 s84, -1")
    A("  s_cbranch_scc1 L_h_ep")
    A("  s_mov_b64 s[86:87], 0")
    for r in (97, 99, 101, 103, 105):
        A(f"  v_cmp_eq_u32 vcc, s84, v{r}")
        A("  s_or_b64 s[86:87], s[86:87], vcc")
    A("  s_cmp_lg_u64 s[86:87], 0")
    A("  s_cbranch_scc1 L_h_ep")
    layernorm(28, 74)
    A("  v_lshlrev_b32 v5, 2, v4")
    A("  v_add_u32 v5, s74, v5")
    for k in range(8):
        A(f"  v_mov_b32 v{8 + k}, 0")
    A("  s_waitcnt lgkmcnt(0)")
    HW = hwin

    def h_issue(n):
        if n < 64:
            r = 32 + 4 * (n % HW)
            A(f"  buffer_load_dwordx4 v[{r}:{r + 3}], v6, s[12:15], s59 offen nt")
            A(f"  s_add_u32 s59, s59, {8 * 3584}")
        elif n < 71:
            r = 128 + 4 * (n - 64)
            A(f"  buffer_load_dwordx4 v[{r}:{r + 3}], v7, s[48:51], s76 offen nt")
            A("  s_add_u32 s76, s76, 8192")

    for n in range(HW):
        h_issue(n)
    for blk in range(8):
        for i in range(8):
            A(f"  ds_read_b32 v{16 + i}, v5 offset:{(blk * 8 + i) * 32}")
        for i in range(8):
            n = blk * 8 + i
            A(f"  s_waitcnt vmcnt({HW - 1}) lgkmcnt({7 - i})")
            A(f"  v_lshrrev_b32 v24, 16, v{16 + i}")
            gemv_acc(8, 32 + 4 * (n % HW), 24, 16 + i)
            h_issue(n + HW)
    for n in range(64 + HW, 71):
        h_issue(n)
    A("  v_lshlrev_b32 v5, 5, v0")
    A(f"  v_add_u32 v5, {HPART}, v5")
    A("  s_nop 1")
    A("  ds_write_b128 v5, v[8:11]")
    A("  ds_write_b128 v5, v[12:15] offset:16")
    A(f"  v_add_u32 v7, {HPART}, v3")
    A("  s_waitcnt lgkmcnt(0)")
    for g in range(8):
        A(f"  ds_read_b32 v{16 + g}, v7 offset:{g * 256}")
    A("  s_waitcnt lgkmcnt(0)")
    for a, b in ((16, 17), (18, 19), (20, 21), (22, 23), (16, 18), (20, 22), (16, 20)):
        A(f"  v_add_f32 v{a}, v{a}, v{b}")
    rnd1(16)
    A("  v_lshlrev_b32 v17, 16, v188")
    A("  v_add_f32 v16, v16, v17")
    rnd1(16)
    A("  v_cmp_lt_f32 vcc, 0, v16")
    A("  s_nop 1")
    A("  v_cndmask_b32 v16, 0, v16, vcc")
    A("  v_mul_f32 v16, v16, v16")
    rnd1(16)
    A(f"  v_add_u32 v17, {HID}, v3")
    A("  ds_write_b32 v17, v16")
    A("  v_lshlrev_b32 v17, 2, v4")
    A(f"  v_add_u32 v17, {HID}, v17")
    for k in range(8):
        A(f"  v_mov_b32 v{8 + k}, 0")
    A("  s_waitcnt lgkmcnt(0)")
    for i in range(7):
        A(f"  ds_read_b32 v{18 + i}, v17 offset:{i * 32}")
    A("  s_waitcnt vmcnt(0) lgkmcnt(0)")
    for i in range(7):
        A(f"  v_lshrrev_b32 v26, 16, v{18 + i}")
        gemv_acc(8, 128 + 4 * i, 26, 18 + i)
    A("  s_nop 2")
    A("  ds_write_b128 v5, v[8:11]")
    A("  ds_write_b128 v5, v[12:15] offset:16")
    A("  s_waitcnt lgkmcnt(0)")
    for g in range(8):
        A(f"  ds_read_b32 v{16 + g}, v7 offset:{g * 256}")
    A("  s_waitcnt lgkmcnt(0)")
    for a, b in ((16, 17), (18, 19), (20, 21), (22, 23), (16, 18), (20, 22), (16, 20)):
        A(f"  v_add_f32 v{a}, v{a}, v{b}")
    A(f"  v_add_u32 v17, {ZB}, v3")
    A("  ds_write_b32 v17, v16")
    A("  v_lshlrev_b32 v8, 16, v189")
    A("  v_and_b32 v9, 0xffff0000, v189")
    A("  v_lshlrev_b32 v10, 16, v190")
    A("  v_and_b32 v11, 0xffff0000, v190")
    A(f"  v_mov_b32 v5, {FIN}")
    A("  v_mov_b32 v12, s84")
    A("  ds_write_b128 v5, v[8:11]")
    A("  ds_write_b32 v5, v12 offset:16")
    wait_lds_ge("h1", LANDED, sig0)
    A("  v_mov_b32 v5, 0")
    A("  s_branch L_h_poll1")
    A("L_h_poll:")
    budget()
    A("  s_sleep 64")
    A("L_h_poll1:")
    A("  buffer_load_dword v6, v5, s[68:71], 0 offen sc0 sc1")
    A("  s_waitcnt vmcnt(0)")
    A("  v_readfirstlane_b32 s75, v6")
    A("  s_cmp_eq_u32 s75, 1")
    A("  s_cbranch_scc0 L_h_poll")
    A("  s_lshl_b32 s83, s2, 7")
    A("  s_mov_b64 exec, 1")
    A("  buffer_store_dword v12, v5, s[44:47], s83 offen sc0 sc1")
    A("  s_mov_b64 exec, -1")
    A("  v_mov_b32 v8, s4")
    A("  v_and_b32 v9, 7, v0")
    A("  v_subrev_u32 v10, 16, v0")
    A("  v_and_b32 v10, 31, v10")
    A("  v_mov_b32 v11, s5")
    A("  v_cmp_le_u32 vcc, 16, v0")
    A("  s_nop 1")
    A("  v_cndmask_b32 v8, v8, v10, vcc")
    A("  v_cndmask_b32 v9, v9, v11, vcc")
    A("  v_lshrrev_b32 v10, 2, v8")
    A("  v_and_b32 v11, 3, v8")
    A("  v_lshl_add_u32 v10, v11, 3, v10")
    A("  v_lshl_add_u32 v10, v9, 5, v10")
    A("  v_lshlrev_b32 v10, 7, v10")
    A("  v_and_b32 v13, 31, v0")
    A("  s_and_b32 s57, s2, 7")
    A("  v_lshlrev_b32 v11, 3, v13")
    A("  v_add_u32 v11, s57, v11")
    A("  v_lshlrev_b32 v11, 7, v11")
    A("  v_lshlrev_b32 v13, 3, v13")
    wait_lds_ge("hq", LANDED, qchk)
    A("  s_branch L_h_epoll1")
    A("L_h_epoll:")
    budget()
    A("  s_sleep 64")
    A("L_h_epoll1:")
    A("  buffer_load_dword v16, v10, s[44:47], 0 offen sc0 sc1 nt")
    if ctl:
        A("  buffer_load_dword v17, v11, s[44:47], 0 offen sc0 sc1 nt")
    A("  s_waitcnt vmcnt(0)")
    if ctl:
        A("  v_max_u32 v18, v16, v17")
        A("  v_cmp_eq_u32 vcc, -1, v18")
    else:
        A("  v_cmp_eq_u32 vcc, -1, v16")
    A("  s_cbranch_vccnz L_h_epoll")
    A(f"  v_add_u32 v5, {EL}, v3")
    A("  ds_write_b32 v5, v16")
    tlo, tmid, thi = [int(x) for x in th.split(",")]
    A(f"  v_mov_b32 v191, {LANDED}")
    A("  s_mov_b32 s76, 0")
    A("  s_mov_b32 s79, 0")
    A("  v_mov_b32 v15, s84")
    A("L_h_ev:")
    budget()
    A("  s_sleep 2")
    A("  ds_read_b128 v[32:35], v191")
    A("  s_waitcnt lgkmcnt(0)")
    A("  v_readfirstlane_b32 s75, v32")
    A("  v_readfirstlane_b32 s77, v35")
    A("  s_cmp_lg_u32 s79, 0")
    A("  s_cbranch_scc1 L_h_ev2")
    A("  s_cmp_ge_u32 s77, 4")
    A("  s_cbranch_scc1 L_h_mid")
    A("  s_branch L_h_ev3")
    A("L_h_ev2:")
    A(f"  s_cmp_ge_u32 s75, {NT - nboost - 2}")
    A("  s_cbranch_scc1 L_h_exit")
    A("L_h_ev3:")
    if ctl:
        A("  s_cmp_ge_u32 s75, s76")
        A("  s_cbranch_scc0 L_h_ev")
        A(f"  s_add_u32 s76, s75, {cstep}")
        A("  v_mov_b32 v14, s75")
        A("  v_mov_b32 v5, 0")
        A("  s_mov_b64 exec, 1")
        A("  buffer_store_dwordx2 v[14:15], v5, s[44:47], s89 offen")
        A("  s_mov_b64 exec, -1")
        A("  buffer_load_dwordx2 v[32:33], v13, s[44:47], s88 offen nt")
        A("  s_waitcnt vmcnt(0)")
        A("  v_cmp_eq_u32 vcc, v33, v17")
        A("  v_subrev_u32 v32, s75, v32")
        A("  s_bcnt1_i32_b32 s78, vcc_lo")
        A("  v_cndmask_b32 v32, 0, v32, vcc")
        for r in (1, 2, 4, 8):
            A("  s_nop 1")
            A(f"  v_add_u32_dpp v32, v32, v32 row_ror:{r} row_mask:0xf bank_mask:0xf")
        A("  s_nop 0")
        A("  v_readlane_b32 s60, v32, 0")
        A("  v_readlane_b32 s61, v32, 16")
        A("  s_add_u32 s60, s60, s61")
        A("  s_lshl_b32 s60, s60, 1")
        A(f"  s_mul_i32 s61, s78, {cstep}")
        A("  s_add_u32 s60, s60, s61")
        A("  s_mov_b32 s62, 0")
        A(f"  s_mul_i32 s61, s78, {tlo}")
        A("  s_cmp_le_i32 s60, s61")
        A("  s_cselect_b32 s62, 1, s62")
        A(f"  s_mul_i32 s61, s78, {tmid}")
        A("  s_cmp_ge_i32 s60, s61")
        A("  s_cselect_b32 s62, 2, s62")
        A(f"  s_mul_i32 s61, s78, {thi}")
        A("  s_cmp_ge_i32 s60, s61")
        A("  s_cselect_b32 s62, 3, s62")
        A("  s_cmp_lt_u32 s78, 8")
        A("  s_cselect_b32 s62, 0, s62")
        A("  v_mov_b32 v32, s62")
        A("  ds_write_b32 v191, v32 offset:4")
    A("  s_branch L_h_ev")
    A("L_h_mid:")
    A(f"  v_mov_b32 v5, {WML}")
    A("  ds_read_b128 v[20:23], v5")
    A("  ds_read_b128 v[24:27], v5 offset:16")
    A(f"  s_mov_b32 s60, {hex(LOG2E)}")
    A("  v_mov_b32 v5, 0")
    A("  v_mov_b32 v29, s84")
    A("  v_mov_b32 v31, s84")
    A("  s_waitcnt lgkmcnt(0)")
    A("  v_max_f32 v28, v20, v22")
    A("  v_max3_f32 v28, v24, v26, v28")
    for r in (20, 22, 24, 26):
        A(f"  v_sub_f32 v{r}, v{r}, v28")
    for r in (20, 22, 24, 26):
        A(f"  v_mul_f32 v{r}, s60, v{r}")
    for r in (20, 22, 24, 26):
        A(f"  v_exp_f32 v{r}, v{r}")
    A("  s_nop 0")
    A("  v_mul_f32 v30, v20, v21")
    A("  v_fmac_f32 v30, v22, v23")
    A("  v_fmac_f32 v30, v24, v25")
    A("  v_fmac_f32 v30, v26, v27")
    A("  s_mov_b64 exec, 1")
    A("  buffer_store_dwordx4 v[28:31], v5, s[44:47], s83 offen offset:16 sc0 sc1")
    A("  s_mov_b64 exec, 0xffff")
    A("L_h_mpoll:")
    budget()
    if msleep:
        A(f"  s_sleep {msleep}")
    A("  buffer_load_dwordx4 v[20:23], v10, s[44:47], 0 offen offset:16 sc0 sc1")
    A("  s_waitcnt vmcnt(0)")
    A("  v_xor_b32 v24, v21, v16")
    A("  v_xor_b32 v25, v23, v16")
    A("  v_or_b32 v24, v24, v25")
    A("  v_cmp_ne_u32 vcc, 0, v24")
    A("  s_cbranch_vccnz L_h_mpoll")
    A("  v_mov_b32 v24, v20")
    for r in (1, 2, 4):
        A("  s_nop 1")
        A(f"  v_max_f32_dpp v24, v24, v24 row_ror:{r} row_mask:0xf bank_mask:0xf")
    A("  v_sub_f32 v20, v20, v24")
    A("  v_mul_f32 v20, s60, v20")
    A("  v_exp_f32 v20, v20")
    A("  s_nop 0")
    A("  v_mul_f32 v20, v20, v22")
    for r in (1, 2, 4):
        A("  s_nop 1")
        A(f"  v_add_f32_dpp v20, v20, v20 row_ror:{r} row_mask:0xf bank_mask:0xf")
    A("  v_rcp_f32 v21, v20")
    A("  s_nop 0")
    A("  v_fma_f32 v22, -v20, v21, 1.0")
    A("  v_fma_f32 v26, v22, v21, v21")
    A("  v_mov_b32 v25, v24")
    A("  v_mov_b32 v24, 1")
    A("  v_mov_b32 v27, 0")
    A(f"  v_mov_b32 v5, {GOK}")
    A("  s_mov_b64 exec, 1")
    A("  ds_write_b128 v5, v[24:27]")
    A("  s_mov_b64 exec, -1")
    A("  s_mov_b32 s79, 1")
    A("  s_branch L_h_ev")
    A("L_h_exit:")
    A("  s_waitcnt vmcnt(0) lgkmcnt(0)")
    stamp(0)
    A("L_end:")
    A("  s_endpgm")

    nv = 248 if stamps else 192
    A('.section .rodata,"a"')
    A(".p2align 6")
    A(f".amdhsa_kernel {NAME}_kernel")
    A(f"  .amdhsa_next_free_vgpr {nv}")
    A("  .amdhsa_next_free_sgpr 102")
    A(f"  .amdhsa_accum_offset {nv}")
    A("  .amdhsa_group_segment_fixed_size 0")
    A("  .amdhsa_kernarg_size 104")
    A("  .amdhsa_user_sgpr_count 2")
    A("  .amdhsa_user_sgpr_kernarg_segment_ptr 1")
    A("  .amdhsa_system_sgpr_workgroup_id_x 1")
    A("  .amdhsa_float_denorm_mode_32 3")
    A(".end_amdhsa_kernel")
    return "\n".join(L) + "\n"


if __name__ == "__main__":
    out = sys.argv[1] if len(sys.argv) > 1 else "cdna_kernels/" + NAME + ".s"
    kw = {}
    for a in sys.argv[2:]:
        k, v = a.split("=")
        kw[k] = v if k in ("wl", "th") else int(v)
    open(out, "w").write(gen(**kw))
```

```python
import sys

NAME = "parallel_sum__mha_block_cached__dense_activation_squared_relu__decode"
HEADER = open("cdna_kernels/" + NAME + ".s.ref").read().split("; Override launch geometry")[0]

RING = 0
NSLOT = 8
CTRL = 131072
LANDED = CTRL + 0
QCNT = CTRL + 8
MCNT = CTRL + 12
GOK = CTRL + 16
WSEL = CTRL + 4
GEN = CTRL + 32
FIN = CTRL + 64
WML = CTRL + 128
R1 = CTRL + 512
R2 = R1 + 8192
XN = R1
SC = R1
QPART = R2
PART = R1
HXN = R2 + 8192
QBUF = HXN + 2048
HPART = QBUF + 1024
HID = HPART + 2048
ZB = HID + 256
EL = ZB + 256
YP = EL + 256
LDS_TOTAL = YP + 1024

WS_E = 0x0
WS_RESET = 0x8000
WS_PG = 0x8000
WS_M2 = 0x9000
WS_YZ = 0x10000
WS_PO = 0x50000
WS_P2 = 0x90000
WS_HP = 0xD0000
WS_SIZE = 0xF0000
WS_DBG = 0x8000000

LOG2E = 0x3FB8AA3B
SCALE = 0x3DB504F3
EPS = 0x3727C5AC


def gen(W=20, stamps=0, sleep_c=4, hstart=10, sig0=22, qchk=32, hwin=4, psleep=0, fine=0, nboost=12, W2=40,
        wl="19,23,26", th="-4,3,6", cstep=2, msleep=2, ctl=1, womid=1, pmask=1, n0=6, lvl0=3, fast=1, fr=15, dly=2, mfast=1, coop=1, pp2=1, stg=5, r2=4, ps2=0, f2="sc0 sc1", s2f="sc0 sc1"):
    L = []
    A = L.append
    NT = 256

    A(HEADER.rstrip("\n"))
    A(f"; @launch grid=(256,1,1) block=(384,1,1) lds={LDS_TOTAL}")
    A('.amdgcn_target "amdgcn-amd-amdhsa--gfx950"')
    A(".text")
    A(f".globl {NAME}_kernel")
    A(".p2align 8")
    A(f".type {NAME}_kernel,@function")
    A(f"{NAME}_kernel:")
    A("  s_cmp_ge_u32 s2, 256")
    A("  s_cbranch_scc1 L_end")
    if stamps:
        A("  s_memrealtime s[90:91]")
    A("  s_load_dwordx16 s[16:31], s[0:1], 0")
    A("  s_load_dwordx8 s[32:39], s[0:1], 64")
    A("  s_load_dwordx2 s[40:41], s[0:1], 96")
    A("  v_lshrrev_b32 v1, 6, v0")
    A("  v_and_b32 v0, 63, v0")
    A("  v_lshlrev_b32 v2, 4, v0")
    A("  v_readfirstlane_b32 s3, v1")
    A("  s_and_b32 s4, s2, 7")
    A("  s_lshl_b32 s4, s4, 2")
    A("  s_lshr_b32 s5, s2, 3")
    A("  s_and_b32 s5, s5, 3")
    A("  s_add_u32 s4, s4, s5")
    A("  s_lshr_b32 s5, s2, 5")
    A("  s_lshl_b32 s7, s4, 3")
    A("  s_add_u32 s7, s7, s5")
    A("  s_mov_b32 s98, 0x200000")
    A("  s_cmp_lg_u32 s3, 0")
    A("  s_waitcnt lgkmcnt(0)")
    A("  s_cbranch_scc1 L_notloader")

    def budget():
        A("  s_sub_u32 s98, s98, 1")
        A("  s_cbranch_scc1 L_end")

    def srd(d, ptr, nbytes):
        A(f"  s_mov_b32 s{d}, s{ptr}")
        A(f"  s_mov_b32 s{d+1}, s{ptr+1}")
        A(f"  s_mov_b32 s{d+2}, {nbytes}")
        A(f"  s_mov_b32 s{d+3}, 0x20000")

    def ws_srd():
        srd(44, 40, 0x10000000 if stamps else WS_SIZE)

    def stamp(slot):
        if not stamps:
            return
        A("  s_memrealtime s[92:93]")
        A("  s_getreg_b32 s94, hwreg(HW_REG_XCC_ID)")
        A("  s_waitcnt lgkmcnt(0)")
        A("  v_mov_b32 v240, s90")
        A("  v_mov_b32 v241, s91")
        A("  v_mov_b32 v242, s92")
        A("  v_mov_b32 v243, s94")
        A("  s_mul_i32 s95, s2, 6")
        A("  s_add_u32 s95, s95, s3")
        A("  s_lshl_b32 s95, s95, 4")
        A(f"  s_add_u32 s95, s95, {WS_DBG + slot * 0x100000}")
        A("  v_mov_b32 v244, 0")
        A("  s_mov_b64 s[96:97], exec")
        A("  s_mov_b64 exec, 1")
        A("  buffer_store_dwordx4 v[240:243], v244, s[44:47], s95 offen")
        A("  s_mov_b64 exec, s[96:97]")

    def ts(k):
        if stamps:
            A(f"  s_memrealtime s[{20 + 2 * k}:{21 + 2 * k}]")

    A("  s_lshl_b32 s42, s7, 21")
    A("  s_lshr_b32 s43, s7, 11")
    A("  s_add_u32 s8, s18, s42")
    A("  s_addc_u32 s9, s19, s43")
    A("  s_mov_b32 s10, 0x200000")
    A("  s_mov_b32 s11, 0x20000")
    SJ, SSLOT, SMO, SPUB, ST, SG = 50, 51, 52, 54, 55, 56
    A(f"  s_mov_b32 s{SSLOT}, {RING}")
    A(f"  s_mov_b32 s{SMO}, 0")

    def ld_tile(w, srdn, hook=None):
        for i in range(16):
            if i % 4 == 0:
                A(f"  s_add_u32 m0, s{SSLOT}, {(i // 4) * 4096}")
                if w is None:
                    A("  s_nop 0")
            if w is not None:
                A(f"  s_waitcnt vmcnt({w - 1})")
            A(f"  buffer_load_dwordx4 v2, {srdn}, s{SMO} offen offset:{(i % 4) * 1024} nt lds")
            if i % 4 == 3:
                A(f"  s_add_u32 s{SMO}, s{SMO}, 4096")
            if hook:
                hook(i)

    def ld_advance():
        A(f"  s_add_u32 s{SJ}, s{SJ}, 1")
        A(f"  s_add_u32 s{SSLOT}, s{SSLOT}, 16384")
        A(f"  s_and_b32 s{SSLOT}, s{SSLOT}, {NSLOT * 16384 - 1}")

    def ld_gen_read(nxt):
        A(f"  s_add_u32 s{ST}, s{SJ}, {nxt}")
        A(f"  s_and_b32 s{ST}, s{ST}, {NSLOT - 1}")
        A(f"  s_lshl_b32 s{ST}, s{ST}, 2")
        A(f"  s_add_u32 s{ST}, s{ST}, {GEN}")
        A(f"  v_mov_b32 v5, s{ST}")
        A("  ds_read_b32 v6, v5")

    def publish():
        A(f"  v_mov_b32 v3, s{SPUB}")
        A("  ds_write_b32 v4, v3")

    ld_tile(None, "s[8:11]")
    A("  s_setprio 3")
    A("  s_add_u32 s12, s20, s42")
    A("  s_addc_u32 s13, s21, s43")
    A(f"  s_mov_b32 s{SJ}, 0")
    A(f"  s_mov_b32 s{SPUB}, 0")
    A(f"  v_mov_b32 v4, {LANDED}")
    ld_advance()
    if stamps:
        ws_srd()
    A("  s_barrier")
    if stamps:
        A("  v_mov_b32 v10, 0")
        A("  s_memrealtime s[92:93]")
    ld_gen_read(0)

    def prog_stamp():
        if stamps:
            if fine:
                A(f"  s_sub_u32 m0, s{SJ}, {fine}")
                A("  s_max_i32 m0, m0, 0")
            else:
                A(f"  s_lshr_b32 m0, s{SJ}, 2")
            A("  s_min_u32 m0, m0, 63")
            A("  s_nop 0")
            A("  v_writelane_b32 v10, s92, m0")

    levels = [W] + [int(x) for x in wl.split(",")]
    SW = 57

    def body(w):
        ipub = (15 + w) % 16
        lag = (15 + w) // 16 - 1

        def hook(i):
            if i == ipub:
                A(f"  s_sub_u32 s{ST}, s{SJ}, {lag}")
                A(f"  s_max_i32 s{SPUB}, s{SPUB}, s{ST}")
                publish()
            if i == 10:
                ld_gen_read(1)
                A("  ds_read_b32 v7, v4 offset:4")

        ld_tile(w, "s[8:11]", hook)
        A("  s_branch L_ld_adv")

    A("  v_mov_b32 v7, 0")
    A("L_ld_loop:")
    A("  s_waitcnt lgkmcnt(0)")
    prog_stamp()
    A(f"  v_readfirstlane_b32 s{SG}, v6")
    A(f"  v_readfirstlane_b32 s{SW}, v7")
    A(f"  s_lshr_b32 s{ST}, s{SJ}, 3")
    A(f"  s_cmp_ge_u32 s{SG}, s{ST}")
    A("  s_cbranch_scc0 L_ld_slow")
    A("L_ld_go:")
    if n0:
        A(f"  s_cmp_lt_u32 s{SJ}, {n0}")
        A(f"  s_cbranch_scc1 {'L_ld_wB' if lvl0 == 4 else 'L_ld_w%d' % lvl0}")
    A(f"  s_cmp_lg_u32 s{SW}, 0")
    A("  s_cbranch_scc1 L_ld_sel")
    A(f"  s_cmp_ge_u32 s{SJ}, {NT - nboost}")
    A("  s_cbranch_scc1 L_ld_wB")
    body(levels[0])
    A("L_ld_sel:")
    A(f"  s_cmp_ge_u32 s{SJ}, {NT - nboost}")
    A("  s_cbranch_scc1 L_ld_wB")
    A(f"  s_cmp_eq_u32 s{SW}, 2")
    A("  s_cbranch_scc1 L_ld_w2")
    A(f"  s_cmp_eq_u32 s{SW}, 3")
    A("  s_cbranch_scc1 L_ld_w3")
    body(levels[1])
    A("L_ld_w2:")
    body(levels[2])
    A("L_ld_w3:")
    body(levels[3])
    A("L_ld_slow:")
    A("  s_waitcnt vmcnt(0)")
    A(f"  s_max_u32 s{SPUB}, s{SPUB}, s{SJ}")
    publish()
    A("L_ld_slow2:")
    budget()
    A("  s_sleep 1")
    A("  ds_read_b32 v6, v5")
    A("  s_waitcnt lgkmcnt(0)")
    A(f"  v_readfirstlane_b32 s{SG}, v6")
    A(f"  s_lshr_b32 s{ST}, s{SJ}, 3")
    A(f"  s_cmp_ge_u32 s{SG}, s{ST}")
    A("  s_cbranch_scc0 L_ld_slow2")
    A("  s_branch L_ld_go")
    A("L_ld_wB:")
    body(W2)
    A("L_ld_sw:")
    A("  s_mov_b32 s8, s12")
    A("  s_mov_b32 s9, s13")
    A(f"  s_mov_b32 s{SMO}, 0")
    A("  s_branch L_ld_loop")
    A("L_ld_adv:")
    ld_advance()
    if stamps:
        A("  s_memrealtime s[92:93]")
    A(f"  s_and_b32 s{ST}, s{SJ}, 127")
    A("  s_cbranch_scc1 L_ld_loop")
    A(f"  s_cmp_lt_u32 s{SJ}, {NT}")
    A("  s_cbranch_scc1 L_ld_sw")
    nrem = (max(levels + [W2]) + 15) // 16 + 1
    for k in range(nrem - 1, -1, -1):
        A(f"  s_waitcnt vmcnt({min(63, 16 * k)})")
        A(f"  s_max_u32 s{SPUB}, s{SPUB}, {NT - k}")
        publish()
    A("  s_waitcnt lgkmcnt(0)")
    if stamps:
        A("  s_lshl_b32 s95, s2, 8")
        A(f"  s_add_u32 s95, s95, {WS_DBG + 3 * 0x100000}")
        A("  v_lshlrev_b32 v11, 2, v0")
        A("  buffer_store_dword v10, v11, s[44:47], s95 offen")
    stamp(0)
    A("  s_endpgm")

    def wave_allsum(v, t, s0, rors=(1, 2, 4, 8)):
        for r in rors:
            A("  s_nop 1")
            A(f"  v_add_f32_dpp v{v}, v{v}, v{v} row_ror:{r} row_mask:0xf bank_mask:0xf")
        A("  s_nop 0")
        for k in range(4):
            A(f"  v_readlane_b32 s{s0 + k}, v{v}, {16 * k}")
        A("  s_nop 1")
        A(f"  v_mov_b32 v{v}, s{s0}")
        A(f"  v_mov_b32 v{t}, s{s0 + 2}")
        A(f"  v_add_f32 v{v}, s{s0 + 1}, v{v}")
        A(f"  v_add_f32 v{t}, s{s0 + 3}, v{t}")
        A(f"  v_add_f32 v{v}, v{v}, v{t}")

    def rnd1(v):
        A(f"  v_cvt_pk_bf16_f32 v{v}, 0, v{v}")

    def layernorm(xr, xnbase_sgpr):
        X = 8
        for k in range(4):
            A(f"  v_lshlrev_b32 v{X + 2 * k}, 16, v{xr + k}")
            A(f"  v_and_b32 v{X + 2 * k + 1}, 0xffff0000, v{xr + k}")
        A(f"  v_add_f32 v16, v{X}, v{X+1}")
        A(f"  v_add_f32 v17, v{X+2}, v{X+3}")
        A(f"  v_add_f32 v18, v{X+4}, v{X+5}")
        A(f"  v_add_f32 v19, v{X+6}, v{X+7}")
        A("  v_add_f32 v16, v16, v17")
        A("  v_add_f32 v18, v18, v19")
        A("  v_add_f32 v16, v16, v18")
        wave_allsum(16, 17, 60)
        A("  v_mul_f32 v16, 0x3b000000, v16")
        A("  v_mov_b32 v18, 0")
        for k in range(8):
            A(f"  v_sub_f32 v19, v{X + k}, v16")
            A("  v_fmac_f32 v18, v19, v19")
        wave_allsum(18, 17, 60)
        A("  v_mul_f32 v18, 0x3b000000, v18")
        rnd1(16)
        rnd1(18)
        A(f"  v_add_f32 v18, {hex(EPS)}, v18")
        rnd1(18)
        A("  v_sqrt_f32 v18, v18")
        A("  s_nop 0")
        rnd1(18)
        A("  v_rcp_f32 v19, v18")
        for k in range(8):
            A(f"  v_sub_f32 v{X + k}, v{X + k}, v16")
        for k in range(8):
            rnd1(X + k)
        for k in range(8):
            A(f"  v_mul_f32 v{20 + k}, v{X + k}, v19")
        for k in range(8):
            A(f"  v_fma_f32 v{X + k}, -v{20 + k}, v18, v{X + k}")
        for k in range(8):
            A(f"  v_fma_f32 v{20 + k}, v{X + k}, v19, v{20 + k}")
        for k in range(8):
            rnd1(20 + k)
        A("  v_lshlrev_b32 v16, 5, v0")
        A(f"  v_add_u32 v16, s{xnbase_sgpr}, v16")
        A("  ds_write_b128 v16, v[20:23]")
        A("  ds_write_b128 v16, v[24:27] offset:16")

    def gemv_acc(acc, wreg, lo, hi):
        for k in range(4):
            A(f"  v_dot2c_f32_bf16 v{acc + 2 * k}, v{lo}, v{wreg + k}")
            A(f"  v_dot2c_f32_bf16 v{acc + 2 * k + 1}, v{hi}, v{wreg + k}")

    def wait_lds_ge(tag, addr, thr, slp=8):
        A(f"  v_mov_b32 v191, {addr}")
        A(f"L_wl_{tag}:")
        budget()
        A(f"  s_sleep {slp}")
        A("  ds_read_b32 v1, v191")
        A("  s_waitcnt lgkmcnt(0)")
        A("  v_readfirstlane_b32 s75, v1")
        A(f"  s_cmp_ge_u32 s75, {thr}")
        A(f"  s_cbranch_scc0 L_wl_{tag}")

    def slot_offsets():
        A("  s_lshl_b32 s82, s7, 10")
        A(f"  s_add_u32 s80, s82, {WS_PO}")
        A(f"  s_add_u32 s82, s82, {WS_YZ}")

    A("L_notloader:")
    A("  s_cmp_eq_u32 s3, 5")
    A("  s_cbranch_scc1 L_helper")

    srd(8, 16, 1024)
    srd(12, 22, 512 * 4096 * 2)
    A("  buffer_load_dwordx4 v[28:31], v2, s[8:11], 0 offen nt")
    A("  s_sub_u32 s6, s3, 1")
    A("  v_lshrrev_b32 v4, 4, v0")
    A("  v_and_b32 v5, 15, v0")
    A("  v_lshlrev_b32 v6, 13, v4")
    A("  v_lshl_add_u32 v6, v5, 4, v6")
    A("  s_lshl_b32 s56, s6, 20")
    A("  s_lshl_b32 s57, s4, 8")
    A("  s_add_u32 s56, s56, s57")
    for i in range(32):
        A(f"  buffer_load_dwordx4 v[{32 + 4 * i}:{35 + 4 * i}], v6, s[12:15], s56 offen nt")
        A("  s_add_u32 s56, s56, 32768")
    A("  s_barrier")
    ws_srd()
    srd(48, 24, 4096 * 512 * 2)
    srd(52, 36, 1024)
    A("  s_lshl_b32 s74, s6, 11")
    A(f"  s_add_u32 s74, s74, {XN}")
    A("  s_waitcnt vmcnt(32)")
    layernorm(28, 74)
    A("  s_lshl_b32 s57, s6, 9")
    A("  s_add_u32 s57, s57, s74")
    A("  v_lshlrev_b32 v3, 2, v4")
    A("  v_add_u32 v3, s57, v3")
    for k in range(8):
        A(f"  v_mov_b32 v{8 + k}, 0")
    A("  s_waitcnt lgkmcnt(0)")
    for blk in range(4):
        for i in range(8):
            A(f"  ds_read_b32 v{16 + i}, v3 offset:{(blk * 8 + i) * 16}")
        for i in range(8):
            ii = blk * 8 + i
            A(f"  s_waitcnt vmcnt({31 - ii}) lgkmcnt({7 - i})")
            A(f"  v_lshrrev_b32 v24, 16, v{16 + i}")
            gemv_acc(8, 32 + 4 * ii, 24, 16 + i)
    A("  s_lshl_b32 s57, s6, 11")
    A(f"  s_add_u32 s57, s57, {PART}")
    A("  v_lshlrev_b32 v176, 5, v0")
    A("  v_add_u32 v176, s57, v176")
    A("  s_nop 0")
    A(f"  ds_write_b128 v176, v[8:11] offset:{QPART - PART}")
    A(f"  ds_write_b128 v176, v[12:15] offset:{QPART - PART + 16}")
    A(f"  v_mov_b32 v16, {QCNT}")
    A("  v_mov_b32 v17, 1")
    A("  s_waitcnt lgkmcnt(0)")
    A("  s_mov_b64 exec, 1")
    A("  ds_add_u32 v16, v17")
    A("  s_mov_b64 exec, -1")
    A("  v_lshlrev_b32 v177, 3, v0")
    A(f"  v_add_u32 v177, {PART}, v177")
    A("L_c_qwait:")
    budget()
    A("  ds_read_b32 v17, v16")
    A("  s_waitcnt lgkmcnt(0)")
    A("  v_readfirstlane_b32 s57, v17")
    A("  s_cmp_ge_u32 s57, 4")
    A("  s_cbranch_scc0 L_c_qwait")
    for p in range(16):
        A(f"  ds_read_b64 v[{32 + 2 * p}:{33 + 2 * p}], v177 offset:{QPART - PART + p * 512}")
    A("  s_waitcnt lgkmcnt(0)")
    for step in (8, 4, 2, 1):
        for p in range(step):
            A(f"  v_add_f32 v{32 + 2 * p}, v{32 + 2 * p}, v{32 + 2 * (p + step)}")
            A(f"  v_add_f32 v{33 + 2 * p}, v{33 + 2 * p}, v{33 + 2 * (p + step)}")
    A("  v_cvt_pk_bf16_f32 v32, v32, v33")
    A("  s_lshl_b32 s57, s6, 8")
    A(f"  s_add_u32 s57, s57, {QBUF}")
    A("  v_lshlrev_b32 v16, 2, v0")
    A("  v_add_u32 v16, s57, v16")
    A("  ds_write_b32 v16, v32")
    A("  v_lshlrev_b32 v16, 4, v5")
    A("  v_add_u32 v16, s57, v16")
    A("  s_waitcnt lgkmcnt(0)")
    A("  ds_read_b128 v[4:7], v16")
    slot_offsets()
    ACC, VL, VM = 8, 16, 17
    D = 32
    S = 96
    for k in range(8):
        A(f"  v_mov_b32 v{ACC + k}, 0")
    A(f"  v_mov_b32 v{VL}, 0")
    A(f"  v_mov_b32 v{VM}, 0xff800000")
    A(f"  v_mov_b32 v19, {LANDED}")
    A("  v_lshrrev_b32 v18, 2, v0")
    A("  v_lshlrev_b32 v18, 3, v18")
    A("  s_lshl_b32 s57, s6, 7")
    A(f"  s_add_u32 s57, s57, {SC}")
    A("  v_add_u32 v18, s57, v18")
    A(f"  s_mov_b32 s60, {hex(LOG2E)}")
    A(f"  s_mov_b32 s61, {hex(SCALE)}")
    A("  s_mov_b32 s62, 0xffff0000")
    STI = 63
    A(f"  s_mov_b32 s{STI}, s6")
    A("  s_waitcnt lgkmcnt(0)")
    stamp(1)

    def tile_fetch(tag, extra=None):
        A(f"L_c_loop{tag}:")
        A("  ds_read_b32 v30, v19")
        A(f"  s_and_b32 s64, s{STI}, {NSLOT - 1}")
        A("  s_lshl_b32 s65, s64, 14")
        A("  v_add_u32 v29, s65, v2")
        A("  s_waitcnt lgkmcnt(0)")
        A("  v_readfirstlane_b32 s57, v30")
        A(f"  s_cmp_gt_u32 s57, s{STI}")
        A(f"  s_cbranch_scc1 L_c_go{tag}")
        budget()
        A(f"  s_sleep {sleep_c}")
        A(f"  s_branch L_c_loop{tag}")
        A(f"L_c_go{tag}:")
        if extra:
            extra()
        for i in range(14):
            A(f"  ds_read_b128 v[{D + 4 * i}:{D + 4 * i + 3}], v29 offset:{i * 1024}")
        A("  s_lshl_b32 s64, s64, 2")
        A(f"  s_add_u32 s64, s64, {GEN}")
        A(f"  s_lshr_b32 s65, s{STI}, 3")
        A("  s_add_u32 s65, s65, 1")
        A("  v_mov_b32 v30, s64")
        A("  v_mov_b32 v31, s65")

    def qk_half(h):
        s = S + 8 * h
        d = D + 32 * h
        for i in range(8):
            A(f"  v_dot2_f32_bf16 v{s + i}, v{d + 4 * i}, v4, 0")
        for k in range(1, 4):
            for i in range(8):
                A(f"  v_dot2_f32_bf16 v{s + i}, v{d + 4 * i + k}, v{4 + k}, v{s + i}")

    tile_fetch("K")
    A("  s_waitcnt lgkmcnt(6)")
    for i in (14, 15):
        A(f"  ds_read_b128 v[{D + 4 * i}:{D + 4 * i + 3}], v29 offset:{i * 1024}")
    qk_half(0)
    A("  s_waitcnt lgkmcnt(0)")
    A("  ds_write_b32 v30, v31")
    qk_half(1)
    A("  s_nop 0")
    for j in range(8):
        A(f"  v_add_f32_dpp v{S + 2 * j}, v{S + 2 * j}, v{S + 2 * j} row_ror:8 row_mask:0xf bank_mask:0x3")
    for j in range(8):
        A(f"  v_add_f32_dpp v{S + 2 * j}, v{S + 2 * j + 1}, v{S + 2 * j + 1} row_ror:8 row_mask:0xf bank_mask:0xc")
    U = [S, S + 4, S + 8, S + 12]
    for u in U:
        A(f"  v_add_f32_dpp v{u}, v{u}, v{u} row_half_mirror row_mask:0xf bank_mask:0x5")
    for u in U:
        A(f"  v_add_f32_dpp v{u}, v{u + 2}, v{u + 2} row_half_mirror row_mask:0xf bank_mask:0xa")
    for u in U:
        A(f"  v_add_f32_dpp v{u}, v{u}, v{u} quad_perm:[1,0,3,2] row_mask:0xf bank_mask:0xf")
    for u in U:
        A(f"  v_add_f32_dpp v{u}, v{u}, v{u} quad_perm:[2,3,0,1] row_mask:0xf bank_mask:0xf")
    for u in U:
        A(f"  v_cvt_pk_bf16_f32 v{u}, 0, v{u}")
    for u in U:
        A(f"  v_mul_f32 v{u}, s61, v{u}")
    A(f"  v_cvt_pk_bf16_f32 v20, v{U[0]}, v{U[1]}")
    A(f"  v_cvt_pk_bf16_f32 v21, v{U[2]}, v{U[3]}")
    A("  ds_write_b64 v18, v[20:21]")
    A("  v_lshlrev_b32 v22, 16, v20")
    A("  v_and_b32 v23, s62, v20")
    A("  v_lshlrev_b32 v24, 16, v21")
    A("  v_and_b32 v25, s62, v21")
    A("  v_add_u32 v18, 512, v18")
    A("  v_max_f32 v26, v22, v23")
    A("  v_max3_f32 v26, v24, v25, v26")
    A(f"  v_cmp_gt_f32 vcc, v26, v{VM}")
    A("  s_cbranch_vccnz L_c_newmax")
    A("L_c_cont:")
    for r in (22, 23, 24, 25):
        A(f"  v_sub_f32 v{r}, v{r}, v{VM}")
    for r in (22, 23, 24, 25):
        A(f"  v_mul_f32 v{r}, s60, v{r}")
    for r in (22, 23, 24, 25):
        A(f"  v_exp_f32 v{r}, v{r}")
    A(f"  s_add_u32 s{STI}, s{STI}, 4")
    A("  v_add_f32 v22, v22, v23")
    A("  v_add_f32 v24, v24, v25")
    A(f"  s_cmp_lt_u32 s{STI}, {NT // 2}")
    A("  v_add_f32 v22, v22, v24")
    A(f"  v_add_f32 v{VL}, v{VL}, v22")
    A("  s_cbranch_scc1 L_c_loopK")
    A("  s_branch L_c_mid")
    A("L_c_newmax:")
    A("  s_nop 0")
    A("  v_max_f32_dpp v26, v26, v26 row_ror:4 row_mask:0xf bank_mask:0xf")
    A("  s_nop 1")
    A("  v_max_f32_dpp v26, v26, v26 row_ror:8 row_mask:0xf bank_mask:0xf")
    A("  s_nop 0")
    for k in range(4):
        A(f"  v_readlane_b32 s{64 + k}, v26, {16 * k}")
    A(f"  v_mov_b32 v27, v{VM}")
    A("  s_nop 0")
    for k in range(4):
        A(f"  v_max_f32 v{VM}, s{64 + k}, v{VM}")
    A(f"  v_sub_f32 v27, v27, v{VM}")
    A("  v_mul_f32 v27, s60, v27")
    A("  v_exp_f32 v27, v27")
    A("  s_nop 0")
    A(f"  v_mul_f32 v{VL}, v{VL}, v27")
    A("  s_branch L_c_cont")

    def wo_loads():
        A("  v_and_b32 v28, 7, v0")
        A("  v_lshlrev_b32 v29, 12, v28")
        A("  v_lshrrev_b32 v27, 3, v0")
        A("  v_lshl_add_u32 v29, v27, 4, v29")
        A("  s_lshl_b32 s56, s4, 17")
        A("  s_lshl_b32 s57, s6, 15")
        A("  s_add_u32 s56, s56, s57")
        A("  s_lshl_b32 s57, s5, 7")
        A("  s_add_u32 s56, s56, s57")
        for i in range(4):
            A(f"  buffer_load_dwordx4 v[{160 + 4 * i}:{163 + 4 * i}], v29, s[48:51], s56 offen offset:{i * 1024} nt")

    A("L_c_mid:")
    wave_allsum(VL, 20, 64, rors=(4, 8))
    A("  s_lshl_b32 s57, s6, 3")
    A(f"  s_add_u32 s57, s57, {WML}")
    A("  v_mov_b32 v22, s57")
    A(f"  v_mov_b32 v20, v{VM}")
    A(f"  v_mov_b32 v21, v{VL}")
    A("  ds_write_b64 v22, v[20:21]")
    A(f"  v_mov_b32 v22, {MCNT}")
    A("  v_mov_b32 v23, 1")
    A(f"  v_subrev_u32 v18, {32 * 512}, v18")
    A("  s_waitcnt lgkmcnt(0)")
    A("  s_mov_b64 exec, 1")
    A("  ds_add_u32 v22, v23")
    A("  s_mov_b64 exec, -1")
    A(f"  v_mov_b32 v22, {GOK}")
    A("L_c_gwait:")
    budget()
    A("  s_sleep 1")
    A("  ds_read_b128 v[24:27], v22")
    A("  s_waitcnt lgkmcnt(0)")
    A("  v_readfirstlane_b32 s57, v24")
    A("  s_cmp_eq_u32 s57, 1")
    A("  s_cbranch_scc0 L_c_gwait")
    A(f"  v_mov_b32 v{VM}, v25")
    A(f"  v_mov_b32 v{VL}, v26")
    if womid:
        wo_loads()
    ts(7)

    tile_fetch("V", extra=lambda: A("  ds_read_b64 v[20:21], v18"))
    A("  s_waitcnt lgkmcnt(13)")
    for i in (14, 15):
        A(f"  ds_read_b128 v[{D + 4 * i}:{D + 4 * i + 3}], v29 offset:{i * 1024}")
    A("  v_lshlrev_b32 v22, 16, v20")
    A("  v_and_b32 v23, s62, v20")
    A("  v_lshlrev_b32 v24, 16, v21")
    A("  v_and_b32 v25, s62, v21")
    A("  v_add_u32 v18, 512, v18")
    for r in (22, 23, 24, 25):
        A(f"  v_sub_f32 v{r}, v{r}, v{VM}")
    for r in (22, 23, 24, 25):
        A(f"  v_mul_f32 v{r}, s60, v{r}")
    for r in (22, 23, 24, 25):
        A(f"  v_exp_f32 v{r}, v{r}")
    A("  s_nop 0")
    for r in (22, 23, 24, 25):
        A(f"  v_mul_f32 v{r}, v{r}, v{VL}")
    for k, r in enumerate((22, 23, 24, 25)):
        A(f"  v_cvt_pk_bf16_f32 v{S + 2 * k}, v{r}, 0")
        A(f"  v_cvt_pk_bf16_f32 v{S + 2 * k + 1}, 0, v{r}")
    bank_of = {0: 0, 2: 1, 1: 2, 3: 3}
    for i in range(16):
        if i == 0:
            A("  s_waitcnt lgkmcnt(8)")
        if i == 8:
            A("  s_waitcnt lgkmcnt(0)")
            A("  ds_write_b32 v30, v31")
        pl, ph = S + 2 * (i // 4), S + 2 * (i // 4) + 1
        b = bank_of[i % 4]
        for k in range(4):
            A(f"  v_dot2c_f32_bf16_dpp v{ACC + 2 * k}, v{pl}, v{D + 4 * i + k} row_newbcast:{4 * b} row_mask:0xf bank_mask:0xf")
            A(f"  v_dot2c_f32_bf16_dpp v{ACC + 2 * k + 1}, v{ph}, v{D + 4 * i + k} row_newbcast:{4 * b} row_mask:0xf bank_mask:0xf")
    A(f"  s_add_u32 s{STI}, s{STI}, 4")
    A(f"  s_cmp_lt_u32 s{STI}, {NT - 4 if coop else NT}")
    A("  s_cbranch_scc1 L_c_loopV")
    if coop:
        A("  v_lshrrev_b32 v18, 2, v0")
        A("  v_lshlrev_b32 v18, 3, v18")
        A("  s_lshl_b32 s57, s6, 1")
        A(f"  s_add_u32 s57, s57, {SC + (NT // 2 - 4) * 128}")
        A("  v_add_u32 v18, s57, v18")
        for k in range(4):
            A(f"  ds_read_u16 v{22 + k}, v18 offset:{k * 128}")
        A("  s_lshl_b32 s57, s6, 12")
        A(f"  s_add_u32 s57, s57, {((NT - 4) % NSLOT) * 16384}")
        A("  v_add_u32 v29, s57, v2")
        A("  s_waitcnt lgkmcnt(0)")
        for r in (22, 23, 24, 25):
            A(f"  v_lshlrev_b32 v{r}, 16, v{r}")
        for r in (22, 23, 24, 25):
            A(f"  v_sub_f32 v{r}, v{r}, v{VM}")
        for r in (22, 23, 24, 25):
            A(f"  v_mul_f32 v{r}, s60, v{r}")
        for r in (22, 23, 24, 25):
            A(f"  v_exp_f32 v{r}, v{r}")
        A("  s_nop 0")
        for r in (22, 23, 24, 25):
            A(f"  v_mul_f32 v{r}, v{r}, v{VL}")
        for k, r in enumerate((22, 23, 24, 25)):
            A(f"  v_cvt_pk_bf16_f32 v{S + 2 * k}, v{r}, 0")
            A(f"  v_cvt_pk_bf16_f32 v{S + 2 * k + 1}, 0, v{r}")
        for k in range(4):
            A(f"L_c_q{k}:")
            A("  ds_read_b32 v30, v19")
            A("  s_waitcnt lgkmcnt(0)")
            A("  v_readfirstlane_b32 s57, v30")
            A(f"  s_cmp_gt_u32 s57, {NT - 4 + k}")
            A(f"  s_cbranch_scc1 L_c_qg{k}")
            budget()
            A(f"  s_branch L_c_q{k}")
            A(f"L_c_qg{k}:")
            for i in range(4):
                A(f"  ds_read_b128 v[{D + 4 * i}:{D + 4 * i + 3}], v29 offset:{k * 16384 + i * 1024}")
            for i in range(4):
                A(f"  s_waitcnt lgkmcnt({3 - i})")
                b = bank_of[i]
                for kk in range(4):
                    A(f"  v_dot2c_f32_bf16_dpp v{ACC + 2 * kk}, v{S + 2 * k}, v{D + 4 * i + kk} row_newbcast:{4 * b} row_mask:0xf bank_mask:0xf")
                    A(f"  v_dot2c_f32_bf16_dpp v{ACC + 2 * kk + 1}, v{S + 2 * k + 1}, v{D + 4 * i + kk} row_newbcast:{4 * b} row_mask:0xf bank_mask:0xf")

    stamp(2)
    A("  v_and_b32 v28, 7, v0")
    A("  v_lshlrev_b32 v29, 12, v28")
    A("  v_lshrrev_b32 v27, 3, v0")
    A("  v_lshl_add_u32 v29, v27, 4, v29")
    A(f"  ds_write_b128 v176, v[{ACC}:{ACC + 3}]")
    A(f"  ds_write_b128 v176, v[{ACC + 4}:{ACC + 7}] offset:16")
    if not womid:
        wo_loads()
    A("  v_lshlrev_b32 v20, 2, v27")
    A(f"  v_add_u32 v20, {EL}, v20")
    A("  ds_read_b32 v178, v20")
    A(f"  v_mov_b32 v20, {FIN}")
    A("  ds_read_b32 v182, v20 offset:16")
    A("  ds_read_b128 v[184:187], v20")
    A("  v_and_b32 v22, 31, v0")
    A("  v_lshlrev_b32 v22, 2, v22")
    A(f"  v_add_u32 v22, {EL + 64}, v22")
    A("  ds_read_b32 v183, v22")
    A("  v_lshlrev_b32 v21, 10, v27")
    A("  v_lshl_add_u32 v21, v28, 5, v21")
    A("  s_lshl_b32 s56, s4, 13")
    A("  s_lshl_b32 s57, s6, 8")
    A("  s_add_u32 s56, s56, s57")
    A(f"  s_add_u32 s58, s56, {WS_P2}")
    A(f"  s_add_u32 s56, s56, {WS_PO}")
    A("  s_mov_b32 s59, 0")
    A("  s_mov_b32 s76, 0")
    A("  s_waitcnt lgkmcnt(0)")
    A("  s_barrier")
    ts(0)
    A("  s_cmp_lg_u32 s6, 0")
    A("  s_cbranch_scc1 L_e_poll1")
    for p in range(16):
        A(f"  ds_read_b64 v[{32 + 2 * p}:{33 + 2 * p}], v177 offset:{p * 512}")
    A("  v_mov_b32 v65, v182")
    A("  v_mov_b32 v67, v182")
    A("  s_waitcnt lgkmcnt(0)")
    for step in (8, 4, 2):
        for p in range(step):
            A(f"  v_add_f32 v{32 + 2 * p}, v{32 + 2 * p}, v{32 + 2 * (p + step)}")
            A(f"  v_add_f32 v{33 + 2 * p}, v{33 + 2 * p}, v{33 + 2 * (p + step)}")
    A("  v_add_f32 v64, v32, v34")
    A("  v_add_f32 v66, v33, v35")
    if fast:
        A(f"  s_add_u32 s57, s80, {WS_P2 - WS_PO}")
        A("  buffer_store_dwordx4 v[64:67], v2, s[44:47], s57 offen")
    if fast and dly:
        A("  s_mov_b32 s76, 1")
    else:
        A("  buffer_store_dwordx4 v[64:67], v2, s[44:47], s80 offen sc0 sc1")
    ts(1)
    A("L_e_poll1:")
    if fast:
        A("  s_add_u32 s59, s59, 1")
        A(f"  s_and_b32 s57, s59, {fr}")
        A("  s_cbranch_scc0 L_e_poll1s")
        A("  buffer_load_dwordx4 v[32:35], v21, s[44:47], s58 offen nt")
        A("  buffer_load_dwordx4 v[36:39], v21, s[44:47], s58 offen offset:16 nt")
        A("  s_branch L_e_poll1w")
        A("L_e_poll1s:")
    if fast and dly:
        A("  s_cmp_eq_u32 s76, 0")
        A("  s_cbranch_scc1 L_e_own1")
        A("  s_mov_b64 s[78:79], exec")
        A("  s_mov_b64 exec, -1")
        A("  buffer_store_dwordx4 v[64:67], v2, s[44:47], s80 offen sc0 sc1")
        A("  s_mov_b64 exec, s[78:79]")
        A("  s_mov_b32 s76, 0")
        A("L_e_own1:")
    A("  buffer_load_dwordx4 v[32:35], v21, s[44:47], s56 offen sc0 sc1")
    A("  buffer_load_dwordx4 v[36:39], v21, s[44:47], s56 offen offset:16 sc0 sc1")
    A("L_e_poll1w:")
    A("  s_waitcnt vmcnt(0)")
    A("  v_xor_b32 v22, v33, v178")
    A("  v_xor_b32 v23, v35, v178")
    A("  v_xor_b32 v24, v37, v178")
    A("  v_xor_b32 v25, v39, v178")
    A("  v_or_b32 v22, v22, v23")
    A("  v_or3_b32 v22, v24, v25, v22")
    A("  v_cmp_ne_u32 vcc, 0, v22")
    A("  s_cbranch_vccz L_e_got1")
    if pmask:
        A("  s_mov_b64 exec, vcc")
    budget()
    if psleep:
        A(f"  s_sleep {psleep}")
    A("  s_branch L_e_poll1")
    A("L_e_got1:")
    A("  s_mov_b64 exec, -1")
    if fast and dly == 1:
        A("  s_cmp_eq_u32 s76, 0")
        A("  s_cbranch_scc1 L_e_own2")
        A("  s_mov_b64 s[78:79], exec")
        A("  s_mov_b64 exec, -1")
        A("  buffer_store_dwordx4 v[64:67], v2, s[44:47], s80 offen sc0 sc1")
        A("  s_mov_b64 exec, s[78:79]")
        A("  s_mov_b32 s76, 0")
        A("L_e_own2:")
    ts(2)
    O = (32, 34, 36, 38)
    for o in O:
        A(f"  v_add_f32_dpp v{o}, v{o}, v{o} row_ror:8 row_mask:0xf bank_mask:0xf")
    for o in O:
        A(f"  v_mov_b32 v{o + 1}, v{o}")
    A("  s_nop 0")
    for o in O:
        A(f"  v_permlane16_swap_b32 v{o}, v{o + 1}")
    for o in O:
        A(f"  v_add_f32 v{o}, v{o}, v{o + 1}")
    for o in O:
        A(f"  v_mov_b32 v{o + 1}, v{o}")
    A("  s_nop 0")
    for o in O:
        A(f"  v_permlane32_swap_b32 v{o}, v{o + 1}")
    for o in O:
        A(f"  v_add_f32 v{o}, v{o}, v{o + 1}")
    for k in range(8):
        A(f"  v_mov_b32 v{8 + k}, 0")
    for i, o in enumerate(O):
        A(f"  v_cvt_pk_bf16_f32 v{40 + i}, v{o}, 0")
        A(f"  v_cvt_pk_bf16_f32 v{44 + i}, 0, v{o}")
    for i in range(4):
        gemv_acc(8, 160 + 4 * i, 40 + i, 44 + i)
    A("  v_lshlrev_b32 v20, 5, v27")
    A("  s_lshl_b32 s57, s6, 8")
    A(f"  s_add_u32 s57, s57, {YP}")
    A("  v_add_u32 v20, s57, v20")
    for k in range(8):
        A(f"  v_add_f32_dpp v{8 + k}, v{8 + k}, v{8 + k} quad_perm:[1,0,3,2] row_mask:0xf bank_mask:0xf")
    for k in range(8):
        A(f"  v_add_f32_dpp v{8 + k}, v{8 + k}, v{8 + k} quad_perm:[2,3,0,1] row_mask:0xf bank_mask:0xf")
    for k in range(8):
        A(f"  v_add_f32_dpp v{8 + k}, v{8 + k}, v{8 + k} row_half_mirror row_mask:0xf bank_mask:0xf")
    A("  s_mov_b32 s58, 0x01010101")
    A("  s_mov_b32 s59, 0x01010101")
    A("  s_mov_b64 exec, s[58:59]")
    A("  ds_write_b128 v20, v[8:11]")
    A("  ds_write_b128 v20, v[12:15] offset:16")
    A("  s_mov_b64 exec, -1")
    A("  v_lshlrev_b32 v20, 2, v0")
    A(f"  v_add_u32 v21, {YP}, v20")
    A("  s_waitcnt lgkmcnt(0)")
    ts(3)
    A("  s_barrier")
    ts(4)
    A("  s_cmp_lg_u32 s6, 0")
    A("  s_cbranch_scc1 L_end")
    for p in range(4):
        A(f"  ds_read_b32 v{32 + p}, v21 offset:{p * 256}")
    A(f"  v_add_u32 v22, {ZB}, v20")
    A("  ds_read_b32 v70, v22")
    A("  v_mov_b32 v69, v182")
    A("  v_mov_b32 v71, v182")
    A("  s_mov_b32 s59, 0")
    A("  v_and_b32 v22, 31, v0")
    A("  v_lshlrev_b32 v22, 13, v22")
    A("  v_lshrrev_b32 v23, 5, v0")
    A("  v_lshl_add_u32 v22, v23, 4, v22")
    A("  s_lshl_b32 s56, s5, 10")
    A("  s_lshl_b32 s57, s4, 5")
    A("  s_add_u32 s56, s56, s57")
    A(f"  s_add_u32 s56, s56, {WS_YZ}")
    A("  s_waitcnt lgkmcnt(0)")
    A("  v_add_f32 v32, v32, v33")
    A("  v_add_f32 v34, v34, v35")
    A("  v_add_f32 v68, v32, v34")
    A(f"  buffer_store_dwordx4 v[68:71], v2, s[44:47], s82 offen {s2f}")
    ts(5)
    if pp2:
        bufs = (12, 16, 24)
        for k, x in enumerate(bufs):
            A(f"  buffer_load_dwordx4 v[{x}:{x + 3}], v22, s[44:47], s56 offen {f2}")
            if k < 2:
                A(f"  s_sleep {stg}")
        A("  s_mov_b64 s[66:67], -1")
        A("L_e_poll2:")
        for x in bufs:
            A("  s_waitcnt vmcnt(2)")
            A(f"  v_xor_b32 v28, v{x + 1}, v183")
            A(f"  v_xor_b32 v29, v{x + 3}, v183")
            A("  v_or_b32 v28, v28, v29")
            A("  v_cmp_eq_u32 vcc, 0, v28")
            A("  s_and_b64 exec, vcc, s[66:67]")
            A(f"  v_mov_b32 v8, v{x}")
            A(f"  v_mov_b32 v10, v{x + 2}")
            A("  s_andn2_b64 s[66:67], s[66:67], vcc")
            A("  s_cbranch_scc0 L_e_got2")
            A("  s_mov_b64 exec, s[66:67]")
            A(f"  buffer_load_dwordx4 v[{x}:{x + 3}], v22, s[44:47], s56 offen {f2}")
            A("  s_mov_b64 exec, -1")
        budget()
        if fast and dly == 2:
            A("  s_cmp_eq_u32 s76, 0")
            A("  s_cbranch_scc1 L_e_p2n")
            A("  s_add_u32 s59, s59, 1")
            A(f"  s_cmp_lt_u32 s59, {r2}")
            A("  s_cbranch_scc1 L_e_p2n")
            A("  buffer_store_dwordx4 v[64:67], v2, s[44:47], s80 offen sc0 sc1")
            A("  s_mov_b32 s76, 0")
            A("L_e_p2n:")
        A("  s_branch L_e_poll2")
    else:
        A("L_e_poll2:")
        A(f"  buffer_load_dwordx4 v[8:11], v22, s[44:47], s56 offen {f2}")
        A("  s_waitcnt vmcnt(0)")
        A("  v_xor_b32 v12, v9, v183")
        A("  v_xor_b32 v13, v11, v183")
        A("  v_or_b32 v12, v12, v13")
        A("  v_cmp_ne_u32 vcc, 0, v12")
        A("  s_cbranch_vccz L_e_got2")
        if pmask:
            A("  s_mov_b64 exec, vcc")
        budget()
        if ps2:
            A(f"  s_sleep {ps2}")
        if fast and dly == 2:
            A("  s_add_u32 s59, s59, 1")
            A(f"  s_cmp_lt_u32 s59, {r2}")
            A("  s_cbranch_scc1 L_e_poll2")
            A("  s_cmp_eq_u32 s76, 0")
            A("  s_cbranch_scc1 L_e_own3")
            A("  s_mov_b64 s[78:79], exec")
            A("  s_mov_b64 exec, -1")
            A("  buffer_store_dwordx4 v[64:67], v2, s[44:47], s80 offen sc0 sc1")
            A("  s_mov_b64 exec, s[78:79]")
            A("  s_mov_b32 s76, 0")
            A("L_e_own3:")
        A("  s_branch L_e_poll2")
    A("L_e_got2:")
    A("  s_mov_b64 exec, -1")
    A("  s_nop 0")
    ts(6)
    for r in (1, 2, 4, 8):
        A(f"  v_add_f32_dpp v8, v8, v8 row_ror:{r} row_mask:0xf bank_mask:0xf")
        A(f"  v_add_f32_dpp v10, v10, v10 row_ror:{r} row_mask:0xf bank_mask:0xf")
        A("  s_nop 0")
    for k in range(4):
        A(f"  v_readlane_b32 s{60 + k}, v8, {16 * k}")
    for k in range(4):
        A(f"  v_readlane_b32 s{64 + k}, v10, {16 * k}")
    A("  s_nop 0")
    A("  v_mov_b32 v8, s60")
    A("  v_mov_b32 v9, s62")
    A("  v_mov_b32 v10, s64")
    A("  v_mov_b32 v11, s66")
    A("  v_add_f32 v8, s61, v8")
    A("  v_add_f32 v9, s63, v9")
    A("  v_add_f32 v10, s65, v10")
    A("  v_add_f32 v11, s67, v11")
    for r in (8, 9, 10, 11):
        rnd1(r)
    for k in range(4):
        A(f"  v_add_f32 v{8 + k}, v{184 + k}, v{8 + k}")
    for r in (8, 9, 10, 11):
        rnd1(r)
    A("  v_add_f32 v8, v8, v10")
    A("  v_add_f32 v9, v9, v11")
    A("  v_cvt_pk_bf16_f32 v8, v8, v9")
    A("  s_lshl_b32 s56, s5, 7")
    A("  s_lshl_b32 s57, s4, 2")
    A("  s_add_u32 s56, s56, s57")
    A("  v_mov_b32 v9, 0")
    A("  s_mov_b64 exec, 1")
    A("  buffer_store_dword v8, v9, s[52:55], s56 offen")
    if fast and dly == 2:
        A("  s_cmp_eq_u32 s76, 0")
        A("  s_cbranch_scc1 L_e_own4")
        A("  s_mov_b64 s[78:79], exec")
        A("  s_mov_b64 exec, -1")
        A("  buffer_store_dwordx4 v[64:67], v2, s[44:47], s80 offen sc0 sc1")
        A("  s_mov_b64 exec, s[78:79]")
        A("  s_mov_b32 s76, 0")
        A("L_e_own4:")
    if stamps:
        A("  s_waitcnt lgkmcnt(0)")
        for k in range(8):
            A(f"  v_mov_b32 v{200 + k}, s{20 + 2 * k}")
        A("  s_lshl_b32 s95, s2, 5")
        A(f"  s_add_u32 s95, s95, {WS_DBG + 4 * 0x100000}")
        A("  buffer_store_dwordx4 v[200:203], v9, s[44:47], s95 offen")
        A("  buffer_store_dwordx4 v[204:207], v9, s[44:47], s95 offen offset:16")
    A("  s_mov_b64 exec, -1")
    stamp(0)
    A("  s_endpgm")

    A("L_helper:")
    A("  v_lshlrev_b32 v3, 2, v0")
    A(f"  v_add_u32 v4, {CTRL}, v3")
    A("  v_mov_b32 v5, 0")
    A("  ds_write_b32 v4, v5")
    A("  s_waitcnt lgkmcnt(0)")
    A("  s_barrier")
    for k in range(4):
        A(f"  v_mov_b32 v{8 + k}, -1")
    ws_srd()
    srd(8, 16, 1024)
    srd(12, 28, 512 * 1792 * 2)
    srd(48, 32, 1792 * 512 * 2)
    srd(52, 30, 1792 * 2)
    srd(64, 34, 1024)
    srd(68, 38, 256)
    slot_offsets()
    wait_lds_ge("h0", LANDED, hstart)
    A("  s_cmp_lg_u32 s2, 0")
    A("  s_cbranch_scc1 L_h_noclear")
    A("  s_mov_b32 s57, 0")
    for i in range(WS_RESET // 4096):
        for k in range(4):
            A(f"  buffer_store_dwordx4 v[8:11], v2, s[44:47], s57 offen offset:{k * 1024} sc0 sc1")
        A("  s_add_u32 s57, s57, 4096")
    A("  s_waitcnt vmcnt(0)")
    A("  v_mov_b32 v5, 0")
    A("  v_mov_b32 v6, 1")
    A("  s_mov_b64 exec, 1")
    A("  buffer_store_dword v6, v5, s[68:71], 0 offen sc0 sc1")
    A("  s_mov_b64 exec, -1")
    A("L_h_noclear:")
    A("  v_mov_b32 v5, 0")
    A("  buffer_load_dwordx4 v[96:99], v2, s[44:47], s80 offen sc0 sc1 nt")
    A("  buffer_load_dwordx4 v[100:103], v2, s[44:47], s82 offen sc0 sc1 nt")
    A(f"  s_add_u32 s57, s80, {WS_P2 - WS_PO}")
    A("  buffer_load_dwordx4 v[108:111], v2, s[44:47], s57 offen sc0 sc1 nt")
    A("  s_and_b32 s88, s2, 7")
    A("  s_lshl_b32 s88, s88, 8")
    A(f"  s_add_u32 s88, s88, {WS_PG}")
    A("  s_lshr_b32 s89, s2, 3")
    A("  s_lshl_b32 s89, s89, 3")
    A("  s_add_u32 s89, s89, s88")
    A("  buffer_load_dwordx2 v[104:105], v5, s[44:47], s89 offen sc0 sc1 nt")
    A("  s_lshl_b32 s99, s7, 4")
    A(f"  s_add_u32 s99, s99, {WS_M2}")
    A("  buffer_load_dwordx4 v[112:115], v5, s[44:47], s99 offen sc0 sc1 nt")
    A("  s_lshl_b32 s58, s7, 9")
    A(f"  s_add_u32 s58, s58, {WS_HP}")
    A("  v_lshlrev_b32 v187, 3, v0")
    A("  buffer_load_dwordx2 v[116:117], v187, s[44:47], s58 offen sc0 sc1 nt")
    A("  buffer_load_dwordx4 v[28:31], v2, s[8:11], 0 offen nt")
    A("  v_lshlrev_b32 v7, 1, v0")
    A("  s_mul_i32 s72, s4, 112")
    A("  buffer_load_ushort v188, v7, s[52:55], s72 offen nt")
    A("  s_lshl_b32 s72, s5, 7")
    A("  s_lshl_b32 s73, s4, 2")
    A("  s_add_u32 s72, s72, s73")
    A("  buffer_load_dword v189, v5, s[8:11], s72 offen nt")
    A("  buffer_load_dword v190, v5, s[64:67], s72 offen nt")
    A("  v_lshrrev_b32 v4, 3, v0")
    A("  v_and_b32 v5, 7, v0")
    A("  v_mul_u32_u24 v6, 3584, v4")
    A("  v_lshlrev_b32 v7, 4, v5")
    A("  v_add_u32 v6, v6, v7")
    A("  v_lshlrev_b32 v7, 10, v4")
    A("  v_lshl_add_u32 v7, v5, 4, v7")
    A("  s_mul_i32 s59, s4, 112")
    A(f"  s_mul_i32 s76, s5, {64 * 3584}")
    A("  s_add_u32 s59, s59, s76")
    A("  s_mul_i32 s76, s4, 57344")
    A("  s_lshl_b32 s73, s5, 7")
    A("  s_add_u32 s76, s76, s73")
    A(f"  s_mov_b32 s74, {HXN}")
    A("  s_waitcnt vmcnt(0)")
    A("  v_readfirstlane_b32 s84, v97")
    A("L_h_ep:")
    A("  s_add_u32 s84, s84, 1")
    A("  s_cmp_eq_u32 s84, -1")
    A("  s_cbranch_scc1 L_h_ep")
    A("  s_mov_b64 s[86:87], 0")
    for r in (97, 99, 101, 103, 105, 109, 111, 113, 115, 117):
        A(f"  v_cmp_eq_u32 vcc, s84, v{r}")
        A("  s_or_b64 s[86:87], s[86:87], vcc")
    A("  s_cmp_lg_u64 s[86:87], 0")
    A("  s_cbranch_scc1 L_h_ep")
    for i in range(8):
        A(f"  buffer_load_dwordx4 v[{32 + 4 * i}:{35 + 4 * i}], v6, s[12:15], s59 offen nt")
        A(f"  s_add_u32 s59, s59, {8 * 3584}")
    layernorm(28, 74)
    A("  v_lshlrev_b32 v5, 2, v4")
    A("  s_lshl_b32 s57, s5, 8")
    A("  s_add_u32 s57, s57, s74")
    A("  v_add_u32 v5, s57, v5")
    for k in range(8):
        A(f"  v_mov_b32 v{8 + k}, 0")
    A("  s_waitcnt lgkmcnt(0)")
    for i in range(8):
        A(f"  ds_read_b32 v{16 + i}, v5 offset:{i * 32}")
    A("  s_waitcnt vmcnt(0) lgkmcnt(0)")
    for i in range(7):
        A(f"  buffer_load_dwordx4 v[{128 + 4 * i}:{131 + 4 * i}], v7, s[48:51], s76 offen nt")
        A("  s_add_u32 s76, s76, 8192")
    for i in range(8):
        A(f"  v_lshrrev_b32 v24, 16, v{16 + i}")
        gemv_acc(8, 32 + 4 * i, 24, 16 + i)
    A("  v_lshlrev_b32 v185, 5, v0")
    A(f"  v_add_u32 v185, {HPART}, v185")
    A(f"  v_add_u32 v186, {HPART}, v3")
    A("  s_nop 0")
    A("  ds_write_b128 v185, v[8:11]")
    A("  ds_write_b128 v185, v[12:15] offset:16")
    A("  s_waitcnt lgkmcnt(0)")
    for g in range(8):
        A(f"  ds_read_b32 v{16 + g}, v186 offset:{g * 256}")
    A("  s_waitcnt lgkmcnt(0)")
    for a_, b_ in ((16, 17), (18, 19), (20, 21), (22, 23), (16, 18), (20, 22), (16, 20)):
        A(f"  v_add_f32 v{a_}, v{a_}, v{b_}")
    A("  v_mov_b32 v17, s84")
    A("  buffer_store_dwordx2 v[16:17], v187, s[44:47], s58 offen sc0 sc1")
    A("  v_lshlrev_b32 v8, 16, v189")
    A("  v_and_b32 v9, 0xffff0000, v189")
    A("  v_lshlrev_b32 v10, 16, v190")
    A("  v_and_b32 v11, 0xffff0000, v190")
    A(f"  v_mov_b32 v5, {FIN}")
    A("  v_mov_b32 v12, s84")
    A("  ds_write_b128 v5, v[8:11]")
    A("  ds_write_b32 v5, v12 offset:16")
    wait_lds_ge("h1", LANDED, sig0)
    A("  v_mov_b32 v5, 0")
    A("  s_branch L_h_poll1")
    A("L_h_poll:")
    budget()
    A("  s_sleep 64")
    A("L_h_poll1:")
    A("  buffer_load_dword v6, v5, s[68:71], 0 offen sc0 sc1")
    A("  s_waitcnt vmcnt(0)")
    A("  v_readfirstlane_b32 s75, v6")
    A("  s_cmp_eq_u32 s75, 1")
    A("  s_cbranch_scc0 L_h_poll")
    A("  s_lshl_b32 s83, s2, 7")
    A("  s_mov_b64 exec, 1")
    A("  buffer_store_dword v12, v5, s[44:47], s83 offen sc0 sc1")
    A("  s_mov_b64 exec, -1")
    A("  v_mov_b32 v8, s4")
    A("  v_and_b32 v9, 7, v0")
    A("  v_subrev_u32 v10, 16, v0")
    A("  v_and_b32 v10, 31, v10")
    A("  v_mov_b32 v11, s5")
    A("  v_cmp_le_u32 vcc, 16, v0")
    A("  s_nop 1")
    A("  v_cndmask_b32 v8, v8, v10, vcc")
    A("  v_cndmask_b32 v9, v9, v11, vcc")
    A("  v_lshrrev_b32 v10, 2, v8")
    A("  v_and_b32 v11, 3, v8")
    A("  v_lshl_add_u32 v10, v11, 3, v10")
    A("  v_lshl_add_u32 v10, v9, 5, v10")
    A("  v_lshlrev_b32 v10, 7, v10")
    A("  v_and_b32 v13, 31, v0")
    A("  s_and_b32 s57, s2, 7")
    A("  v_lshlrev_b32 v11, 3, v13")
    A("  v_add_u32 v11, s57, v11")
    A("  v_lshlrev_b32 v11, 7, v11")
    A("  v_lshlrev_b32 v13, 3, v13")
    wait_lds_ge("hq", LANDED, qchk)
    A("  s_branch L_h_epoll1")
    A("L_h_epoll:")
    budget()
    A("  s_sleep 64")
    A("L_h_epoll1:")
    A("  buffer_load_dword v16, v10, s[44:47], 0 offen sc0 sc1 nt")
    if ctl:
        A("  buffer_load_dword v17, v11, s[44:47], 0 offen sc0 sc1 nt")
    A("  s_waitcnt vmcnt(0)")
    if ctl:
        A("  v_max_u32 v18, v16, v17")
        A("  v_cmp_eq_u32 vcc, -1, v18")
    else:
        A("  v_cmp_eq_u32 vcc, -1, v16")
    A("  s_cbranch_vccnz L_h_epoll")
    A(f"  v_add_u32 v5, {EL}, v3")
    A("  ds_write_b32 v5, v16")
    for k in range(8):
        A(f"  v_readlane_b32 s{60 + k}, v16, {k}")
    A("  s_lshl_b32 s58, s4, 12")
    A(f"  s_add_u32 s58, s58, {WS_HP}")
    A("  s_branch L_h_hpoll1")
    A("L_h_hpoll:")
    budget()
    A("  s_sleep 64")
    A("L_h_hpoll1:")
    for k in range(8):
        A(f"  buffer_load_dwordx2 v[{64 + 2 * k}:{65 + 2 * k}], v187, s[44:47], s58 offen offset:{k * 512} sc0 sc1 nt")
    A("  s_waitcnt vmcnt(0)")
    A("  v_xor_b32 v48, s60, v65")
    for k in range(1, 8):
        A(f"  v_xor_b32 v49, s{60 + k}, v{65 + 2 * k}")
        A("  v_or_b32 v48, v48, v49")
    A("  v_cmp_ne_u32 vcc, 0, v48")
    A("  s_cbranch_vccnz L_h_hpoll")
    for a_, b_ in ((64, 66), (68, 70), (72, 74), (76, 78), (64, 68), (72, 76), (64, 72)):
        A(f"  v_add_f32 v{a_}, v{a_}, v{b_}")
    rnd1(64)
    A("  v_lshlrev_b32 v65, 16, v188")
    A("  v_add_f32 v64, v64, v65")
    rnd1(64)
    A("  v_cmp_lt_f32 vcc, 0, v64")
    A("  s_nop 1")
    A("  v_cndmask_b32 v64, 0, v64, vcc")
    A("  v_mul_f32 v64, v64, v64")
    rnd1(64)
    A(f"  v_add_u32 v65, {HID}, v3")
    A("  ds_write_b32 v65, v64")
    A("  v_lshlrev_b32 v65, 2, v4")
    A(f"  v_add_u32 v65, {HID}, v65")
    for k in range(8):
        A(f"  v_mov_b32 v{40 + k}, 0")
    A("  s_waitcnt lgkmcnt(0)")
    for i in range(7):
        A(f"  ds_read_b32 v{48 + i}, v65 offset:{i * 32}")
    A("  s_waitcnt lgkmcnt(0)")
    for i in range(7):
        A(f"  v_lshrrev_b32 v56, 16, v{48 + i}")
        gemv_acc(40, 128 + 4 * i, 56, 48 + i)
    A("  s_nop 2")
    A("  ds_write_b128 v185, v[40:43]")
    A("  ds_write_b128 v185, v[44:47] offset:16")
    A("  s_waitcnt lgkmcnt(0)")
    for g in range(8):
        A(f"  ds_read_b32 v{48 + g}, v186 offset:{g * 256}")
    A("  s_waitcnt lgkmcnt(0)")
    for a_, b_ in ((48, 49), (50, 51), (52, 53), (54, 55), (48, 50), (52, 54), (48, 52)):
        A(f"  v_add_f32 v{a_}, v{a_}, v{b_}")
    A(f"  v_add_u32 v49, {ZB}, v3")
    A("  ds_write_b32 v49, v48")
    tlo, tmid, thi = [int(x) for x in th.split(",")]
    A(f"  v_mov_b32 v191, {LANDED}")
    A("  s_mov_b32 s76, 0")
    A("  s_mov_b32 s79, 0")
    A("  v_mov_b32 v15, s84")
    A("L_h_ev:")
    budget()
    A("  s_sleep 2")
    A("  ds_read_b128 v[32:35], v191")
    A("  s_waitcnt lgkmcnt(0)")
    A("  v_readfirstlane_b32 s75, v32")
    A("  v_readfirstlane_b32 s77, v35")
    A("  s_cmp_lg_u32 s79, 0")
    A("  s_cbranch_scc1 L_h_ev2")
    A("  s_cmp_ge_u32 s77, 4")
    A("  s_cbranch_scc1 L_h_mid")
    A("  s_branch L_h_ev3")
    A("L_h_ev2:")
    A(f"  s_cmp_ge_u32 s75, {NT - nboost - 2}")
    A("  s_cbranch_scc1 L_h_exit")
    A("L_h_ev3:")
    if ctl:
        A("  s_cmp_ge_u32 s75, s76")
        A("  s_cbranch_scc0 L_h_ev")
        A(f"  s_add_u32 s76, s75, {cstep}")
        A("  v_mov_b32 v14, s75")
        A("  v_mov_b32 v5, 0")
        A("  s_mov_b64 exec, 1")
        A("  buffer_store_dwordx2 v[14:15], v5, s[44:47], s89 offen")
        A("  s_mov_b64 exec, -1")
        A("  buffer_load_dwordx2 v[32:33], v13, s[44:47], s88 offen nt")
        A("  s_waitcnt vmcnt(0)")
        A("  v_cmp_eq_u32 vcc, v33, v17")
        A("  v_subrev_u32 v32, s75, v32")
        A("  s_bcnt1_i32_b32 s78, vcc_lo")
        A("  v_cndmask_b32 v32, 0, v32, vcc")
        for r in (1, 2, 4, 8):
            A("  s_nop 1")
            A(f"  v_add_u32_dpp v32, v32, v32 row_ror:{r} row_mask:0xf bank_mask:0xf")
        A("  s_nop 0")
        A("  v_readlane_b32 s60, v32, 0")
        A("  v_readlane_b32 s61, v32, 16")
        A("  s_add_u32 s60, s60, s61")
        A("  s_lshl_b32 s60, s60, 1")
        A(f"  s_mul_i32 s61, s78, {cstep}")
        A("  s_add_u32 s60, s60, s61")
        A("  s_mov_b32 s62, 0")
        A(f"  s_mul_i32 s61, s78, {tlo}")
        A("  s_cmp_le_i32 s60, s61")
        A("  s_cselect_b32 s62, 1, s62")
        A(f"  s_mul_i32 s61, s78, {tmid}")
        A("  s_cmp_ge_i32 s60, s61")
        A("  s_cselect_b32 s62, 2, s62")
        A(f"  s_mul_i32 s61, s78, {thi}")
        A("  s_cmp_ge_i32 s60, s61")
        A("  s_cselect_b32 s62, 3, s62")
        A("  s_cmp_lt_u32 s78, 8")
        A("  s_cselect_b32 s62, 0, s62")
        A("  v_mov_b32 v32, s62")
        A("  ds_write_b32 v191, v32 offset:4")
    A("  s_branch L_h_ev")
    A("L_h_mid:")
    A(f"  v_mov_b32 v5, {WML}")
    A("  ds_read_b128 v[20:23], v5")
    A("  ds_read_b128 v[24:27], v5 offset:16")
    A(f"  s_mov_b32 s60, {hex(LOG2E)}")
    A("  v_mov_b32 v5, 0")
    A("  v_mov_b32 v29, s84")
    A("  v_mov_b32 v31, s84")
    A("  s_waitcnt lgkmcnt(0)")
    A("  v_max_f32 v28, v20, v22")
    A("  v_max3_f32 v28, v24, v26, v28")
    for r in (20, 22, 24, 26):
        A(f"  v_sub_f32 v{r}, v{r}, v28")
    for r in (20, 22, 24, 26):
        A(f"  v_mul_f32 v{r}, s60, v{r}")
    for r in (20, 22, 24, 26):
        A(f"  v_exp_f32 v{r}, v{r}")
    A("  s_nop 0")
    A("  v_mul_f32 v30, v20, v21")
    A("  v_fmac_f32 v30, v22, v23")
    A("  v_fmac_f32 v30, v24, v25")
    A("  v_fmac_f32 v30, v26, v27")
    A("  s_mov_b64 exec, 1")
    if mfast:
        A("  buffer_store_dwordx4 v[28:31], v5, s[44:47], s99 offen")
        A("  s_mov_b64 exec, 0xffff")
        A("  v_and_b32 v18, 7, v0")
        A("  v_lshlrev_b32 v18, 4, v18")
        A("  s_lshl_b32 s61, s4, 7")
        A(f"  s_add_u32 s61, s61, {WS_M2}")
        A("  s_mov_b32 s62, 0")
        A("  s_mov_b32 s63, 1")
        A("L_h_mpoll:")
        budget()
        A("  s_sleep 1")
        A("  s_add_u32 s62, s62, 1")
        A("  s_and_b32 s57, s62, 15")
        A("  s_cbranch_scc0 L_h_mslow")
        A("  buffer_load_dwordx4 v[20:23], v18, s[44:47], s61 offen nt")
        A("  s_branch L_h_mw")
        A("L_h_mslow:")
        A("  s_cmp_eq_u32 s63, 0")
        A("  s_cbranch_scc1 L_h_mo1")
        A("  s_mov_b64 exec, 1")
        A("  buffer_store_dwordx4 v[28:31], v5, s[44:47], s83 offen offset:16 sc0 sc1")
        A("  s_mov_b64 exec, 0xffff")
        A("  s_mov_b32 s63, 0")
        A("L_h_mo1:")
        A("  buffer_load_dwordx4 v[20:23], v10, s[44:47], 0 offen offset:16 sc0 sc1")
        A("L_h_mw:")
        A("  s_waitcnt vmcnt(0)")
    else:
        A("  buffer_store_dwordx4 v[28:31], v5, s[44:47], s83 offen offset:16 sc0 sc1")
        A("  s_mov_b64 exec, 0xffff")
        A("L_h_mpoll:")
        budget()
        if msleep:
            A(f"  s_sleep {msleep}")
        A("  buffer_load_dwordx4 v[20:23], v10, s[44:47], 0 offen offset:16 sc0 sc1")
        A("  s_waitcnt vmcnt(0)")
    A("  v_xor_b32 v24, v21, v16")
    A("  v_xor_b32 v25, v23, v16")
    A("  v_or_b32 v24, v24, v25")
    A("  v_cmp_ne_u32 vcc, 0, v24")
    A("  s_cbranch_vccnz L_h_mpoll")
    A("  v_mov_b32 v24, v20")
    for r in (1, 2, 4):
        A("  s_nop 1")
        A(f"  v_max_f32_dpp v24, v24, v24 row_ror:{r} row_mask:0xf bank_mask:0xf")
    A("  v_sub_f32 v20, v20, v24")
    A("  v_mul_f32 v20, s60, v20")
    A("  v_exp_f32 v20, v20")
    A("  s_nop 0")
    A("  v_mul_f32 v20, v20, v22")
    for r in (1, 2, 4):
        A("  s_nop 1")
        A(f"  v_add_f32_dpp v20, v20, v20 row_ror:{r} row_mask:0xf bank_mask:0xf")
    A("  v_rcp_f32 v21, v20")
    A("  s_nop 0")
    A("  v_fma_f32 v22, -v20, v21, 1.0")
    A("  v_fma_f32 v26, v22, v21, v21")
    A("  v_mov_b32 v25, v24")
    A("  v_mov_b32 v24, 1")
    A("  v_mov_b32 v27, 0")
    A(f"  v_mov_b32 v5, {GOK}")
    A("  s_mov_b64 exec, 1")
    A("  ds_write_b128 v5, v[24:27]")
    if mfast:
        A("  s_cmp_eq_u32 s63, 0")
        A("  s_cbranch_scc1 L_h_mo2")
        A("  v_mov_b32 v5, 0")
        A("  buffer_store_dwordx4 v[28:31], v5, s[44:47], s83 offen offset:16 sc0 sc1")
        A("L_h_mo2:")
    A("  s_mov_b64 exec, -1")
    A("  s_mov_b32 s79, 1")
    A("  s_branch L_h_ev")
    A("L_h_exit:")
    A("  s_waitcnt vmcnt(0) lgkmcnt(0)")
    stamp(0)
    A("L_end:")
    A("  s_endpgm")

    nv = 248 if stamps else 192
    A('.section .rodata,"a"')
    A(".p2align 6")
    A(f".amdhsa_kernel {NAME}_kernel")
    A(f"  .amdhsa_next_free_vgpr {nv}")
    A("  .amdhsa_next_free_sgpr 102")
    A(f"  .amdhsa_accum_offset {nv}")
    A("  .amdhsa_group_segment_fixed_size 0")
    A("  .amdhsa_kernarg_size 104")
    A("  .amdhsa_user_sgpr_count 2")
    A("  .amdhsa_user_sgpr_kernarg_segment_ptr 1")
    A("  .amdhsa_system_sgpr_workgroup_id_x 1")
    A("  .amdhsa_float_denorm_mode_32 3")
    A(".end_amdhsa_kernel")
    return "\n".join(L) + "\n"


if __name__ == "__main__":
    out = sys.argv[1] if len(sys.argv) > 1 else "cdna_kernels/" + NAME + ".s"
    kw = {}
    for a in sys.argv[2:]:
        k, v = a.split("=")
        kw[k] = v.replace("_", " ") if k in ("wl", "th", "f2", "s2f") else int(v)
    open(out, "w").write(gen(**kw))
```
